```python
import torch

def _softmax(x, axis=-1):
    return torch.softmax(x, dim=axis)
def _gelu(x):
    return torch.nn.functional.gelu(x, approximate="tanh")
def _silu(x):
    return torch.nn.functional.silu(x)
def _sigmoid(x):
    return torch.sigmoid(x)
def _layernorm(x, axis=-1, eps=1e-5):
    m = x.mean(dim=axis, keepdim=True)
    v = x.var(dim=axis, keepdim=True, unbiased=False)
    return (x - m) / torch.sqrt(v + eps)
def _scatter_add(tgt, idx, src, axis=0):
    return tgt.clone().index_add_(axis, idx, src)
def _segment_sum(src, seg, n):
    out = torch.zeros((n,) + src.shape[1:], dtype=src.dtype)
    return out.index_add_(0, seg, src)
def _pad(x, pw):
    flat = tuple(v for pair in reversed(pw) for v in pair)
    return torch.nn.functional.pad(x, flat)

kernel_name = 'gather_scatter__edge_featured_mpnn_egc__graph'

def setup_inputs():

    _w = (lambda a: (lambda t: t.to(torch.bfloat16) if t.is_floating_point() else t)(torch.as_tensor(a)))
    N, deg, D, De = 50000, 16, 64, max(16, 1)
    E = N * deg
    return {
        "x": _w((lambda *s: torch.randn(*s, dtype=torch.bfloat16) * 0.2)(N, D)),
        "e_attr": _w((lambda *s: torch.randn(*s, dtype=torch.bfloat16) * 0.2)(E, De)),
        "src": _w((lambda lo, hi, *s: torch.randint(lo, hi, s))(0, N, E).to(torch.int64)),
        "dst": _w((lambda lo, hi, *s: torch.randint(lo, hi, s))(0, N, E).to(torch.int64)),
        "u_w": _w((lambda *s: torch.randn(*s, dtype=torch.bfloat16) * 0.05)(D, D)),
        "v_w": _w((lambda *s: torch.randn(*s, dtype=torch.bfloat16) * 0.05)(D, D)),
        "g_w": _w((lambda *s: torch.randn(*s, dtype=torch.bfloat16) * 0.2)(2 * D + De, D)),
    }

def reference(x, e_attr, src, dst, u_w, v_w, g_w):
    N, D = x.shape
    g_in = torch.concatenate([x[dst], x[src], e_attr], axis=-1)
    eta = _sigmoid(g_in @ g_w)
    hv = x @ v_w
    msg = eta * hv[src]
    agg = _segment_sum(msg, dst, N)
    return _silu(x @ u_w + agg)
```

```python
import sys, re

NAME = "gather_scatter__edge_featured_mpnn_egc__graph"
N_NODES = 50000
N_EDGES = 800000
CH = 1564
NCH = 512
WF_OFF = 0
T_OFF = 0x10000
REC_OFF = 0x100000
EP_OFF = 0x800000
NLOG2E = 0xBFB8AA3B

class Em:
    def __init__(self):
        self.L = []
        self.pend = []
    def __call__(self, s):
        self.L.append("    " + s)
    def label(self, s):
        self.L.append(s + ":")
    def c(self, s):
        self.L.append("    ; " + s)
    def ds(self, s, dst=()):
        self(s)
        self.pend.append(set(dst))
        assert len(self.pend) <= 15, "too many outstanding LDS ops"
    def need(self, regs):
        regs = set(regs)
        last = -1
        for i, d in enumerate(self.pend):
            if d & regs:
                last = i
        if last >= 0:
            n = len(self.pend) - 1 - last
            self(f"s_waitcnt lgkmcnt({n})")
            self.pend = self.pend[last + 1:]
    def drain(self):
        self("s_waitcnt lgkmcnt(0)")
        self.pend = []

def vr(a, n=1):
    return f"v{a}" if n == 1 else f"v[{a}:{a+n-1}]"
def sr(a, n=1):
    return f"s{a}" if n == 1 else f"s[{a}:{a+n-1}]"
def rng(a, n):
    return list(range(a, a + n))

def srd(E, d, lo, hi, nrec, stride=0):
    E(f"s_mov_b32 s{d}, s{lo}")
    if stride:
        E(f"s_or_b32 s{d+1}, s{hi}, {stride << 16}")
    else:
        E(f"s_mov_b32 s{d+1}, s{hi}")
    E(f"s_mov_b32 s{d+2}, {nrec}")
    E(f"s_mov_b32 s{d+3}, 0x20000")

K1_SLAB = 0
K1_HIST = 50176
K1_PREF = 51200
K1_RECL = 52224
K1_INVL = 58624
K1_LDS = 65024

def gen_k1(E, opt):
    st = opt.get("k1_store_flags", "")
    E.label("part_kernel")
    E(f"s_cmp_ge_u32 s2, {NCH}")
    E("s_cbranch_scc1 P_end")
    E("s_load_dwordx4 s[4:7], s[0:1], 8")
    E("s_load_dwordx2 s[8:9], s[0:1], 24")
    E("s_load_dwordx2 s[10:11], s[0:1], 72")
    E("s_load_dwordx4 s[44:47], s[0:1], 32")
    E("s_load_dwordx2 s[48:49], s[0:1], 48")
    E("s_and_b32 s3, s2, 7")
    E("s_lshl_b32 s3, s3, 6")
    E("s_lshr_b32 s36, s2, 3")
    E("s_add_u32 s3, s3, s36")
    E(f"s_mul_i32 s36, s3, {CH}")
    E(f"s_add_u32 s37, s36, {CH}")
    E(f"s_min_u32 s37, s37, {N_EDGES}")
    E("v_lshrrev_b32 v1, 6, v0")
    E("v_lshlrev_b32 v2, 4, v0")
    E("v_readfirstlane_b32 s38, v1")
    E("v_lshlrev_b32 v3, 2, v0")
    E("v_mov_b32 v12, 0")
    E("v_and_b32 v3, 0x3fc, v3")
    E(f"ds_write_b32 v3, v12 offset:{K1_HIST}")
    E("s_lshl_b32 s39, s36, 2")
    E("s_lshl_b32 s40, s36, 5")
    E("s_lshl_b32 s41, s37, 2")
    E("s_lshl_b32 s42, s37, 5")
    E("s_waitcnt lgkmcnt(0)")
    srd(E, 12, 8, 9, "s41")
    srd(E, 16, 6, 7, "s41")
    srd(E, 20, 4, 5, "s42")
    E("buffer_load_dwordx4 v[4:7], v2, s[12:15], s39 offen")
    E("buffer_load_dwordx4 v[8:11], v2, s[16:19], s39 offen")
    E("s_lshl_b32 s43, s38, 10")
    for k in range(6):
        E(f"s_add_u32 m0, s43, {k*8192}")
        E(f"s_add_u32 s50, s40, {k*8192}")
        E(f"buffer_load_dwordx4 v2, s[20:23], s50 offen lds")
    E("s_cmp_lg_u32 s38, 0")
    E("s_cbranch_scc1 P_nodma7")
    E(f"s_mov_b32 m0, {6*8192}")
    E(f"s_add_u32 s50, s40, {6*8192}")
    E(f"buffer_load_dwordx4 v2, s[20:23], s50 offen lds")
    E.label("P_nodma7")
    E(f"s_add_u32 s51, s42, {EP_OFF}")
    srd(E, 24, 10, 11, "s51")
    E(f"s_add_u32 s51, s41, {REC_OFF}")
    srd(E, 28, 10, 11, "s51")
    srd(E, 32, 10, 11, REC_OFF)
    E("s_cmp_eq_u32 s38, 7")
    E("s_cselect_b32 s52, s2, 100")
    E("s_cmp_lt_u32 s52, 17")
    E("s_cbranch_scc0 P_noprep1")
    E("s_mov_b32 s56, s48")
    E("s_mov_b32 s57, s49")
    E("s_mov_b32 s58, 18432")
    E("s_mov_b32 s59, 0x20000")
    E("s_lshl_b32 s53, s52, 11")
    E("s_cmp_lt_u32 s52, 9")
    E("s_cbranch_scc1 P_prepld")
    E("s_mov_b32 s56, s46")
    E("s_mov_b32 s57, s47")
    E("s_mov_b32 s58, 8192")
    E(f"s_sub_u32 s53, s53, {9*2048}")
    E("s_cmp_lt_u32 s52, 13")
    E("s_cbranch_scc1 P_prepld")
    E("s_mov_b32 s56, s44")
    E("s_mov_b32 s57, s45")
    E(f"s_sub_u32 s53, s53, {4*2048}")
    E.label("P_prepld")
    E("v_and_b32 v40, 31, v0")
    E("v_lshlrev_b32 v40, 2, v40")
    E("v_and_b32 v41, 32, v0")
    E("v_lshlrev_b32 v41, 5, v41")
    E("v_add_u32 v40, v40, v41")
    for j in range(8):
        E(f"buffer_load_dword v{44+j}, v40, s[56:59], s53 offen offset:{j*128}")
    E.label("P_noprep1")
    E("s_barrier")
    E("s_sub_u32 s54, s41, s39")
    E("v_cmp_gt_u32 vcc, s54, v2")
    E("s_mov_b32 s60, 85599")
    E(f"s_mov_b32 s61, {80 << 16}")
    E(f"v_mov_b32 v13, {((1 << 29) - (2000 << 16)) & 0xffffffff}")
    E("v_mov_b32 v14, 4")
    E("s_and_saveexec_b64 s[62:63], vcc")
    E("s_cbranch_execz P_nohist")
    E("s_mov_b64 s[64:65], exec")
    E("s_waitcnt vmcnt(6)")
    for j in range(4):
        E(f"v_mul_u32_u24 v{16+j}, s60, v{4+j}")
    for j in range(4):
        E(f"v_lshrrev_b32 v{16+j}, 22, v{16+j}")
    E("v_mov_b32 v15, -49")
    for j in range(4):
        E(f"v_mad_i32_i24 v{4+j}, v{16+j}, v15, v{4+j}")
    for j in range(4):
        E(f"v_mad_u32_u24 v{8+j}, v{4+j}, s61, v{8+j}")
        E(f"v_cmp_le_u32 vcc, 25, v{4+j}")
        E(f"v_lshl_add_u32 v{8+j}, v{16+j}, 30, v{8+j}")
        E(f"v_and_b32 v{16+j}, 0x3fc, v{16+j}")
        E(f"v_cndmask_b32 v{4+j}, 0, v13, vcc")
        E(f"ds_add_rtn_u32 v{20+j}, v{16+j}, v14 offset:{K1_HIST}")
        E(f"v_add_u32 v{8+j}, v{8+j}, v{4+j}")
    E.label("P_nohist")
    E("s_mov_b64 exec, -1")
    E("v_and_b32 v1, 63, v0")
    E("v_lshlrev_b32 v1, 4, v1")
    E("s_waitcnt lgkmcnt(0)")
    E("s_barrier")
    E(f"ds_read_b128 v[24:27], v1 offset:{K1_HIST}")
    E("s_waitcnt lgkmcnt(0)")
    E("v_add_u32 v29, v24, v25")
    E("v_add_u32 v30, v29, v26")
    E("v_add_u32 v31, v30, v27")
    E("v_mov_b32 v28, v31")
    E("s_nop 1")
    for sh in (1, 2, 4, 8):
        E(f"v_add_u32_dpp v28, v28, v28 row_shr:{sh} row_mask:0xf bank_mask:0xf")
        E("s_nop 1")
    E("v_add_u32_dpp v28, v28, v28 row_bcast:15 row_mask:0xa bank_mask:0xf")
    E("s_nop 1")
    E("v_add_u32_dpp v28, v28, v28 row_bcast:31 row_mask:0xc bank_mask:0xf")
    E("s_nop 1")
    E("v_sub_u32 v32, v28, v31")
    E("v_add_u32 v33, v32, v24")
    E("v_add_u32 v34, v32, v29")
    E("v_add_u32 v35, v32, v30")
    E("s_cmp_eq_u32 s38, 7")
    E("s_cbranch_scc1 P_w7")
    E(f"ds_write_b128 v1, v[32:35] offset:{K1_PREF}")
    E("s_sub_u32 s54, s41, s39")
    E("v_cmp_gt_u32 vcc, s54, v2")
    E("s_and_saveexec_b64 s[62:63], vcc")
    E("s_cbranch_execz P_join")
    for j in range(4):
        E(f"ds_read_b32 v{16+j}, v{16+j} offset:{K1_PREF}")
    E("v_lshlrev_b32 v4, 7, v0")
    for j in range(1, 4):
        E(f"v_add_u32 v{4+j}, {32*j}, v4")
    for j in range(4):
        E(f"s_waitcnt lgkmcnt({3})" if j == 0 else f"s_waitcnt lgkmcnt(3)")
        E(f"v_add_u32 v{16+j}, v{16+j}, v{20+j}")
        E(f"ds_write2st64_b32 v{16+j}, v{8+j}, v{4+j} offset0:{K1_RECL//256} offset1:{K1_INVL//256}")
    E("s_branch P_join")
    E.label("P_w7")
    for j in range(4):
        E(f"v_lshrrev_b32 v{32+j}, 2, v{32+j}")
        E(f"v_lshl_add_u32 v{32+j}, v{24+j}, 18, v{32+j}")
        E(f"v_add_u32 v{32+j}, s36, v{32+j}")
    E("s_lshl_b32 s55, s3, 10")
    E(f"s_add_u32 s55, s55, {T_OFF}")
    E(f"buffer_store_dwordx4 v[32:35], v1, s[32:35], s55 offen {st}")
    E("s_cmp_lt_u32 s52, 17")
    E("s_cbranch_scc0 P_join")
    E("s_sub_u32 s54, s52, 4")
    E("s_cmp_lt_u32 s54, 5")
    E(f"s_cselect_b32 s54, {NLOG2E}, 1.0")
    E("s_waitcnt vmcnt(1)")
    for j in range(8):
        E(f"v_lshlrev_b32 v{52+j}, 16, v{44+j}")
        E(f"v_and_b32 v{44+j}, 0xffff0000, v{44+j}")
    for j in range(16):
        E(f"v_mul_f32 v{44+j}, s54, v{44+j}")
    for j in range(4):
        E(f"v_cvt_pk_bf16_f32 v{36+j}, v{52+2*j}, v{53+2*j}")
        E(f"v_cvt_pk_bf16_f32 v{40+j}, v{44+2*j}, v{45+2*j}")
    E("s_lshl_b32 s53, s52, 11")
    E(f"buffer_store_dwordx4 v[36:39], v1, s[32:35], s53 offen")
    E(f"buffer_store_dwordx4 v[40:43], v1, s[32:35], s53 offen offset:1024")
    E.label("P_join")
    E("s_mov_b64 exec, -1")
    E("v_lshrrev_b32 v3, 1, v0")
    E("v_lshlrev_b32 v3, 2, v3")
    E("v_and_b32 v1, 1, v0")
    E("v_lshlrev_b32 v1, 4, v1")
    E("s_mov_b32 s60, 0xffe0")
    E("s_waitcnt vmcnt(0) lgkmcnt(0)")
    E("s_barrier")
    for k in range(7):
        E(f"ds_read_b32 v{4+k}, v3 offset:{K1_INVL + k*1024}")
    E(f"ds_read_b128 v[44:47], v2 offset:{K1_RECL}")
    for k in range(7):
        E(f"s_waitcnt lgkmcnt(7)")
        E(f"v_and_or_b32 v{4+k}, v{4+k}, s60, v1")
        E(f"ds_read_b128 v[{16+4*k}:{19+4*k}], v{4+k}")
    E(f"s_add_u32 s50, s39, {REC_OFF}")
    E("s_waitcnt lgkmcnt(7)")
    E(f"buffer_store_dwordx4 v[44:47], v2, s[28:31], s50 offen {st}")
    for k in range(7):
        E(f"s_add_u32 s50, s40, {EP_OFF + k*8192}")
        E(f"s_waitcnt lgkmcnt({6-k})")
        E(f"buffer_store_dwordx4 v[{16+4*k}:{19+4*k}], v2, s[24:27], s50 offen {st}")
    E.label("P_end")
    E("s_endpgm")

TZ = 0
TS = 2560
CNT = 5120
MAXC = 5152
ER = 5376
XR = 21760
WST = 87296
LIST = 122112
LCAP = 640
K2_LDS = LIST + 8 * LCAP * 8

WB = 0
WV = 32
WC = 64
XA = 72
ACC = 88
Z0 = 120
Z1 = 136
H = 152
X = 168
EE = 184
OH = 188
S = 196
MSG = 204
XP = 212
EPR = 220
DZ = 222
CZ = 223
DS = 224
CS = 228
XAD = 229
EAD = 233
LPX = 234
LPE = 235
LPZ = 236
LPS = 237
VT = 238
TID = 239
TMP = 240
K2_VGPR = 248

def wb(s, f): return WB + (s * 2 + f) * 4
def wv(s, f): return WV + (s * 2 + f) * 4
def wc(f): return WC + f * 4
def xa(s, f): return XA + (s * 2 + f) * 4
def zb(f): return Z1 if f else Z0

def mfma(d, a, b, c):
    cs = "0" if c is None else vr(c, 16)
    return f"v_mfma_f32_32x32x16_bf16 {vr(d,16)}, {vr(a,4)}, {vr(b,4)}, {cs}"

S_X = 12
S_EP = 16
S_WS = 20
S_OUT = 24
S_WAVE = 28
S_G = 29
S_NT = 30
S_XR = 31
S_ER = 32
S_SLOW = 33
S_J = 34
S_MAX = 35
S_NODE = 36
S_LB = 37
S_T0 = 38
S_T1 = 39
S_MASK = 40

def dma_tile(E, slot, spacer=None):
    out = []
    out.append([f"s_add_u32 m0, s{S_ER}, {slot*1024}", "s_nop 0",
                f"buffer_load_dwordx4 {vr(EPR,2)}, s[{S_EP}:{S_EP+3}], 0 idxen offen lds"])
    for i in range(4):
        out.append([f"s_add_u32 m0, s{S_XR}, {slot*4096 + i*1024}", "s_nop 0",
                    f"buffer_load_dwordx4 {vr(XP+2*i,2)}, s[{S_X}:{S_X+3}], 0 idxen offen lds"])
    return out

def rd_list_dma(E, trel):
    E.ds(f"ds_read_b32 v{EPR}, v{LPE} offset:{trel*256}", [EPR])
    for i in range(4):
        E.ds(f"ds_read_u16 v{XP+2*i}, v{LPX} offset:{trel*256 + i*64}", [XP + 2 * i])

def rd_x(E, s, slot):
    E.ds(f"ds_read_b128 {vr(X+4*s,4)}, v{XAD+s} offset:{slot*4096}", rng(X + 4 * s, 4))
def rd_e(E, slot):
    E.ds(f"ds_read_b128 {vr(EE,4)}, v{EAD} offset:{slot*1024}", rng(EE, 4))
def rd_oh(E, s):
    E.ds(f"ds_read_b128 {vr(OH+4*s,4)}, v{DZ} offset:{s*32}", rng(OH + 4 * s, 4))
def rd_s(E, w):
    E.ds(f"ds_read_b64_tr_b16 {vr(S+2*w,2)}, v{DS+w}", rng(S + 2 * w, 2))
def rd_dz(E, trel):
    E.ds(f"ds_read_u16 v{DZ}, v{LPZ} offset:{trel*256}", [DZ])
def rd_ds(E, trel, w):
    E.ds(f"ds_read_u16 v{DS+w}, v{LPS} offset:{trel*256 + w*64}", [DS + w])

def tile_body(E, par, opt):
    prio = opt.get("prio", True)
    def P(n):
        if prio: E(f"s_setprio {n}")
    def M(d, a, b, c):
        E.need(rng(a, 4)); E.need(rng(b, 4))
        E(mfma(d, a, b, c))
    for f in (0, 1):
        z = zb(f); zn = zb(f ^ 1); fn = f ^ 1
        ex = [f"v_exp_f32 v{z+i}, v{z+i}" for i in range(16)]
        rc = [f"v_rcp_f32 v{z+i}, v{z+i}" for i in range(16)]
        cv = [f"v_cvt_pk_bf16_f32 v{MSG+i}, v{H+2*i}, v{H+2*i+1}" for i in range(8)]
        E.c(f"---- slot f={f} par={par} T1")
        P(1)
        M(zn, EE, wc(fn), None)
        if f == 0:
            rd_dz(E, par + 1)
        else:
            for w in range(4): rd_ds(E, par + 1, w)
        for i in range(4): E(cv[i])
        E(ex[0])
        M(zn, OH, xa(0, fn), zn)
        for i in range(4, 8): E(cv[i])
        E(ex[1])
        k = 2
        if f == 1: E("s_waitcnt vmcnt(5)")
        for s in range(4):
            M(H, X + 4 * s, wv(s, f), None if s == 0 else H)
            if f == 1: rd_x(E, s, par ^ 1)
            for i in range(3): E(ex[k]); k += 1
        M(ACC + 16 * fn, S, MSG, ACC + 16 * fn)
        E(ex[k]); E(ex[k + 1])
        M(ACC + 16 * fn, S + 4, MSG + 4, ACC + 16 * fn)
        if f == 0:
            for w in range(4): rd_s(E, w)
        E.c("P1")
        P(0)
        for i in range(16): E(f"v_add_f32 v{z+i}, 1.0, v{z+i}")
        if f == 0:
            E.need([DZ])
            E(f"v_add_u32 v{DZ}, v{DZ}, v{CZ}")
        E.c("T2")
        P(1)
        M(zn, OH + 4, xa(1, fn), zn)
        if f == 0:
            E("s_waitcnt vmcnt(9)")
            rd_e(E, par ^ 1); rd_oh(E, 0); rd_oh(E, 1)
            rd_list_dma(E, par + 3)
        k = 0
        for i in range(3): E(rc[k]); k += 1
        for s in range(4):
            M(zn, X + 4 * s, wb(s, fn), zn)
            if s < 3:
                for i in range(3): E(rc[k]); k += 1
        if f == 1:
            assert not E.pend
            g = dma_tile(E, par ^ 1)
            for q in range(5):
                E(g[q][0])
                if k < 16: E(rc[k]); k += 1
                else: E("s_nop 0")
                E(g[q][2])
        while k < 16: E(rc[k]); k += 1
        E.c("P2")
        P(0)
        if f == 1:
            for w in range(4): E(f"v_add_u32 v{DS+w}, v{DS+w}, v{CS}")
            if par == 1:
                for r in (LPX, LPE, LPZ, LPS): E(f"v_add_u32 v{r}, 512, v{r}")
        for i in range(16): E(f"v_mul_f32 v{H+i}, v{H+i}, v{z+i}")
    assert not E.pend

def gen_k2(E, opt):
    E.label(NAME + "_kernel")
    E("s_cmp_ge_u32 s2, 256")
    E("s_cbranch_scc1 M_end")
    E("s_load_dwordx2 s[4:5], s[0:1], 0")
    E("s_load_dwordx2 s[6:7], s[0:1], 56")
    E("s_load_dwordx2 s[8:9], s[0:1], 72")
    E(f"v_mov_b32 v{TID}, v0")
    E(f"v_lshrrev_b32 v{TMP}, 6, v0")
    E("s_and_b32 s3, s2, 7")
    E("s_lshl_b32 s3, s3, 5")
    E(f"v_readfirstlane_b32 s{S_WAVE}, v{TMP}")
    E("s_lshr_b32 s10, s2, 3")
    E("s_add_u32 s3, s3, s10")
    L = TMP + 1
    E(f"v_and_b32 v{L}, 63, v{TID}")
    E(f"v_lshlrev_b32 v{TMP+2}, 10, v{TID}")
    E(f"s_and_b32 s10, s{S_WAVE}, 3")
    E(f"s_lshr_b32 s11, s{S_WAVE}, 2")
    E(f"s_lshl_b32 s{S_G}, s10, 1")
    E(f"s_add_u32 s{S_G}, s{S_G}, s11")
    E(f"s_lshl_b32 s{S_T0}, s3, 2")
    E(f"s_add_u32 s10, s10, s{S_T0}")
    E(f"s_mul_i32 s10, s10, 49")
    E(f"s_mul_i32 s11, s11, 25")
    E(f"s_add_u32 s{S_NODE}, s10, s11")
    E(f"s_add_u32 s{S_T0}, s{S_T0}, {T_OFF}")
    E("s_waitcnt lgkmcnt(0)")
    srd(E, S_WS, 8, 9, EP_OFF)
    E(f"buffer_load_dword v{VT}, v{TMP+2}, s[{S_WS}:{S_WS+3}], s{S_T0} offen")
    E(f"v_lshlrev_b32 v{TMP+2}, 4, v{TID}")
    E(f"s_lshl_b32 s10, s{S_WAVE}, 10")
    for k in range(4):
        E(f"s_add_u32 m0, s10, {WST + k*8192}")
        E(f"s_mov_b32 s11, {WF_OFF + k*8192}")
        E(f"buffer_load_dwordx4 v{TMP+2}, s[{S_WS}:{S_WS+3}], s11 offen lds")
    E(f"s_cmp_lt_u32 s{S_WAVE}, 2")
    E("s_cbranch_scc0 M_now5")
    E(f"s_add_u32 m0, s10, {WST + 4*8192}")
    E(f"s_mov_b32 s11, {WF_OFF + 4*8192}")
    E(f"buffer_load_dwordx4 v{TMP+2}, s[{S_WS}:{S_WS+3}], s11 offen lds")
    E.label("M_now5")
    srd(E, S_X, 4, 5, N_NODES, 128)
    E(f"v_and_b32 v{TMP+2}, 31, v{L}")
    E(f"v_lshrrev_b32 v{TMP+3}, 5, v{L}")
    E(f"v_add_u32 v{TMP+4}, s{S_NODE}, v{TMP+2}")
    E(f"v_lshlrev_b32 v{TMP+5}, 4, v{TMP+3}")
    for s in range(4):
        E(f"buffer_load_dwordx4 {vr(X+4*s,4)}, {vr(TMP+4,2)}, s[{S_X}:{S_X+3}], 0 idxen offen offset:{s*32}")
    E(f"s_add_u32 s{S_EP}, s8, {EP_OFF}")
    E(f"s_addc_u32 s{S_EP+1}, s9, 0")
    E(f"s_or_b32 s{S_EP+1}, s{S_EP+1}, {32 << 16}")
    E(f"s_mov_b32 s{S_EP+2}, {N_EDGES}")
    E(f"s_mov_b32 s{S_EP+3}, 0x20000")
    srd(E, S_OUT, 6, 7, N_NODES * 128)
    E(f"s_mul_i32 s{S_LB}, s{S_G}, {LCAP*8}")
    E(f"s_add_u32 s{S_LB}, s{S_LB}, {LIST}")
    E(f"s_lshl_b32 s{S_XR}, s{S_WAVE}, 13")
    E(f"s_add_u32 s{S_XR}, s{S_XR}, {XR}")
    E(f"s_lshl_b32 s{S_ER}, s{S_WAVE}, 11")
    E(f"s_add_u32 s{S_ER}, s{S_ER}, {ER}")
    E(f"s_mov_b32 s{S_SLOW}, 0")
    m, h, h16 = TMP + 2, TMP + 3, TMP + 5
    t6, t7 = TMP + 6, TMP + 7
    E(f"s_cmp_eq_u32 s{S_WAVE}, 7")
    E("s_cbranch_scc0 M_notab")
    for i in range(4): E(f"v_mov_b32 v{Z0+i}, 0")
    E(f"v_lshlrev_b32 v{t6}, 4, v{L}")
    for k in range(5):
        E(f"ds_write_b128 v{t6}, {vr(Z0,4)} offset:{TZ + k*1024}")
    E(f"v_and_b32 v{Z0+4}, 0x13, v{m}")
    E(f"v_and_b32 v{Z0+5}, 4, v{m}")
    E(f"v_lshl_add_u32 v{Z0+4}, v{Z0+5}, 1, v{Z0+4}")
    E(f"v_and_b32 v{Z0+5}, 8, v{m}")
    E(f"v_lshrrev_b32 v{Z0+5}, 1, v{Z0+5}")
    E(f"v_add_u32 v{Z0+4}, v{Z0+4}, v{Z0+5}")
    E(f"v_cmp_lt_u32 vcc, 31, v{L}")
    E(f"v_mul_u32_u24 v{Z0+6}, 80, v{L}")
    E(f"v_mov_b32 v{Z0+7}, 0x3f80")
    E(f"v_cndmask_b32 v{Z0+4}, v{Z0+4}, v{m}, vcc")
    E(f"v_cmp_eq_u32 vcc, 31, v{m}")
    E(f"v_lshl_add_u32 v{Z0+6}, v{Z0+4}, 1, v{Z0+6}")
    E("s_nop 0")
    E(f"v_cndmask_b32 v{Z0+7}, v{Z0+7}, v{Z0}, vcc")
    E(f"ds_write_b16 v{Z0+6}, v{Z0+7} offset:{TZ}")
    E.label("M_notab")
    def reset_cnt():
        E(f"v_and_b32 v{Z0+8}, 15, v{TID}")
        E(f"v_mul_u32_u24 v{Z0+9}, {LCAP*8}, v{Z0+8}")
        E(f"v_cmp_gt_u32 vcc, 8, v{Z0+8}")
        E(f"v_add_u32 v{Z0+9}, {LIST}, v{Z0+9}")
        E(f"v_lshlrev_b32 v{Z0+8}, 2, v{Z0+8}")
        E(f"v_cndmask_b32 v{Z0+9}, 0, v{Z0+9}, vcc")
        E(f"ds_write_b32 v{Z0+8}, v{Z0+9} offset:{CNT}")
    E(f"s_cmp_eq_u32 s{S_WAVE}, 6")
    E("s_cbranch_scc0 M_nocnt")
    reset_cnt()
    E.label("M_nocnt")
    E(f"v_lshrrev_b32 v{t6}, 1, v{m}")
    E(f"v_and_b32 v{t6}, 7, v{t6}")
    E(f"v_xor_b32 v{t6}, v{t6}, v{h}")
    E(f"v_lshlrev_b32 v{t7}, 7, v{m}")
    E(f"v_add_u32 v{t7}, s{S_XR}, v{t7}")
    for s in range(4):
        E(f"v_xor_b32 v{XAD+s}, {2*s}, v{t6}")
        E(f"v_lshl_add_u32 v{XAD+s}, v{XAD+s}, 4, v{t7}")
    E(f"v_lshrrev_b32 v{t6}, 3, v{m}")
    E(f"v_and_b32 v{t6}, 1, v{t6}")
    E(f"v_xor_b32 v{t6}, v{t6}, v{h}")
    E(f"v_lshlrev_b32 v{t7}, 5, v{m}")
    E(f"v_add_u32 v{t7}, s{S_ER}, v{t7}")
    E(f"v_lshl_add_u32 v{EAD}, v{t6}, 4, v{t7}")
    E(f"v_and_b32 v{t6}, 7, v{L}")
    E(f"v_lshrrev_b32 v{t7}, 4, v{L}")
    E(f"v_xor_b32 v{t6}, v{t6}, v{t7}")
    E(f"v_lshlrev_b32 v{XP+1}, 4, v{t6}")
    E(f"v_xor_b32 v{XP+3}, 64, v{XP+1}")
    E(f"v_mov_b32 v{XP+5}, v{XP+1}")
    E(f"v_mov_b32 v{XP+7}, v{XP+3}")
    E(f"v_and_b32 v{t6}, 1, v{t6}")
    E(f"v_lshlrev_b32 v{EPR+1}, 4, v{t6}")
    E(f"s_lshl_b32 s10, s{S_G}, 13")
    E(f"v_subrev_u32 v{CZ}, s10, v{h16}")
    if TZ: E(f"v_add_u32 v{CZ}, {TZ}, v{CZ}")
    E(f"v_and_b32 v{t6}, 16, v{L}")
    E(f"v_lshlrev_b32 v{t6}, 1, v{t6}")
    E(f"v_and_b32 v{t7}, 3, v{L}")
    E(f"v_lshl_add_u32 v{t6}, v{t7}, 3, v{t6}")
    E(f"v_subrev_u32 v{CS}, s10, v{t6}")
    E(f"v_add_u32 v{CS}, {TS}, v{CS}")
    E("s_waitcnt vmcnt(8)")
    ST, CN = TMP + 6, TMP + 7
    E(f"v_and_b32 v{ST}, 0xfffff, v{VT}")
    E(f"v_lshrrev_b32 v{CN}, 20, v{VT}")
    RA = TMP + 4
    def rec_loads():
        E(f"v_lshlrev_b32 v{RA}, 2, v{ST}")
        E(f"s_mov_b32 s11, {REC_OFF}")
        for j in range(16):
            E(f"v_cmp_lt_u32 s[{S_MASK+2*j}:{S_MASK+2*j+1}], {j}, v{CN}")
            if j == 0:
                E(f"buffer_load_dwordx4 {vr(H,4)}, v{RA}, s[{S_WS}:{S_WS+3}], s11 offen")
                E(f"buffer_load_dwordx4 {vr(H+4,4)}, v{RA}, s[{S_WS}:{S_WS+3}], s11 offen offset:16")
        E(f"s_or_b64 exec, s[{S_MASK+16}:{S_MASK+17}], 1")
        E(f"buffer_load_dwordx4 {vr(H+8,4)}, v{RA}, s[{S_WS}:{S_WS+3}], s11 offen offset:32")
        E(f"s_or_b64 exec, s[{S_MASK+24}:{S_MASK+25}], 1")
        E(f"buffer_load_dwordx4 {vr(H+12,4)}, v{RA}, s[{S_WS}:{S_WS+3}], s11 offen offset:48")
        E("s_mov_b64 exec, -1")
    rec_loads()
    E("s_waitcnt vmcnt(4) lgkmcnt(0)")
    E("s_barrier")
    WA = TMP + 5
    E(f"v_lshlrev_b32 v{WA}, 4, v{L}")
    E(f"v_add_u32 v{WA}, {WST}, v{WA}")
    for i in range(8):
        E.ds(f"ds_read_b128 {vr(WB+4*i,4)}, v{WA} offset:{i*1024}", rng(WB + 4 * i, 4))
    for s in range(4):
        for f in range(2):
            E.need(rng(wb(s, f), 4))
            E(mfma(zb(f), X + 4 * s, wb(s, f), None if s == 0 else zb(f)))
            i = s * 2 + f
            E.ds(f"ds_read_b128 {vr(WV+4*i,4)}, v{WA} offset:{(26+i)*1024}", rng(WV + 4 * i, 4))
    for s in range(4):
        for f in range(2):
            E.need(rng(wv(s, f), 4))
            E(mfma(ACC + 16 * f, X + 4 * s, wv(s, f), None if s == 0 else ACC + 16 * f))
    E(f"s_mov_b32 s10, {NLOG2E}")
    E("s_nop 3")
    for i in range(32):
        E(f"v_mul_f32 v{Z0+i}, s10, v{Z0+i}")
    for f in range(2):
        for s in range(2):
            for jj in range(4):
                E(f"v_cvt_pk_bf16_f32 v{xa(s,f)+jj}, v{zb(f)+8*s+2*jj}, v{zb(f)+8*s+2*jj+1}")
    E8 = TMP + 3
    E(f"v_mov_b32 v{E8}, 8")
    E.label("M_route")
    for half in range(2):
        E(f"s_waitcnt vmcnt({2 - 2*half})")
        for j in range(8 * half, 8 * half + 8):
            E(f"s_mov_b64 exec, s[{S_MASK+2*j}:{S_MASK+2*j+1}]")
            E(f"v_lshrrev_b32 v{Z0+j}, 27, v{H+j}")
            E(f"ds_add_rtn_u32 v{Z1+j}, v{Z0+j}, v{E8} offset:{CNT}")
            E(f"v_add_u32 v{Z0+j}, {j}, v{ST}")
        E(f"s_waitcnt lgkmcnt(0)")
        for j in range(8 * half, 8 * half + 8):
            E(f"s_mov_b64 exec, s[{S_MASK+2*j}:{S_MASK+2*j+1}]")
            E(f"ds_write2_b32 v{Z1+j}, v{H+j}, v{Z0+j} offset0:0 offset1:1")
        if half == 0: E("s_waitcnt lgkmcnt(7)")
    E("s_mov_b64 exec, -1")
    E(f"v_cmp_lt_u32 vcc, 16, v{CN}")
    E("s_cbranch_vccz M_routed")
    E(f"v_add_u32 v{ST}, 16, v{ST}")
    E(f"v_max_u32 v{CN}, 16, v{CN}")
    E(f"v_subrev_u32 v{CN}, 16, v{CN}")
    E("s_waitcnt lgkmcnt(0)")
    rec_loads()
    E("s_branch M_route")
    E.label("M_routed")
    E("s_waitcnt lgkmcnt(0)")
    E("s_barrier")
    E.label("M_entry")
    E(f"v_and_b32 v{Z0}, 7, v{TID}")
    E(f"v_lshlrev_b32 v{Z0+1}, 2, v{Z0}")
    E(f"ds_read_b32 v{Z0+2}, v{Z0+1} offset:{CNT}")
    E(f"v_mul_u32_u24 v{Z0+3}, {LCAP*8}, v{Z0}")
    E(f"v_add_u32 v{Z0+3}, {LIST + 512*8}, v{Z0+3}")
    E(f"v_and_b32 v{L}, 63, v{TID}")
    E(f"v_lshrrev_b32 v{LPX}, 3, v{L}")
    E(f"v_lshlrev_b32 v{LPX}, 3, v{LPX}")
    E(f"v_add_u32 v{LPX}, s{S_LB}, v{LPX}")
    E(f"v_lshrrev_b32 v{LPE}, 1, v{L}")
    E(f"v_lshlrev_b32 v{LPE}, 3, v{LPE}")
    E(f"s_add_u32 s10, s{S_LB}, 4")
    E(f"v_add_u32 v{LPE}, s10, v{LPE}")
    E(f"v_and_b32 v{LPZ}, 31, v{L}")
    E(f"v_lshlrev_b32 v{LPZ}, 3, v{LPZ}")
    E(f"s_add_u32 s10, s{S_LB}, 2")
    E(f"v_add_u32 v{LPZ}, s10, v{LPZ}")
    E(f"v_and_b32 v{LPS}, 12, v{L}")
    E(f"v_lshlrev_b32 v{LPS}, 1, v{LPS}")
    E(f"v_and_b32 v{Z0+4}, 32, v{L}")
    E(f"v_add3_u32 v{LPS}, v{LPS}, v{Z0+4}, s10")
    E(f"s_lshl_b32 s11, s{S_G}, 29")
    E(f"s_or_b32 s11, s11, {0xFFFF | ((31*80) << 16)}")
    E(f"v_mov_b32 v{Z0+6}, s11")
    E(f"v_mov_b32 v{Z0+7}, 0x100000")
    E(f"v_lshlrev_b32 v{Z0+5}, 3, v{L}")
    E("s_waitcnt lgkmcnt(0)")
    E(f"v_cmp_gt_u32 vcc, v{Z0+2}, v{Z0+3}")
    E(f"v_readlane_b32 s10, v{Z0+2}, s{S_G}")
    E("s_cbranch_vccnz M_slowinit")
    E(f"s_sub_u32 s{S_NT}, s10, s{S_LB}")
    E(f"v_add_u32 v{Z0+5}, s10, v{Z0+5}")
    E(f"ds_write_b64 v{Z0+5}, {vr(Z0+6,2)}")
    E(f"ds_write_b64 v{Z0+5}, {vr(Z0+6,2)} offset:512")
    E(f"s_add_u32 s{S_NT}, s{S_NT}, 255")
    E(f"s_lshr_b32 s{S_NT}, s{S_NT}, 8")
    E(f"s_cbranch_scc0 M_exit")
    for t in range(2):
        rd_list_dma(E, t)
        if t == 0:
            rd_dz(E, 0)
            for w in range(4): rd_ds(E, 0, w)
        for g in dma_tile(E, t):
            reg = int(re.search(r"v\[(\d+):", g[2]).group(1))
            E(g[0]); E.need([reg]); E(g[1]); E(g[2])
    E.need([DZ] + rng(DS, 4))
    E(f"v_add_u32 v{DZ}, v{DZ}, v{CZ}")
    for w in range(4): E(f"v_add_u32 v{DS+w}, v{DS+w}, v{CS}")
    rd_oh(E, 0); rd_oh(E, 1)
    rd_list_dma(E, 2)
    E(f"v_lshlrev_b32 v{WA}, 4, v{L}")
    E(f"v_add_u32 v{WA}, {WST}, v{WA}")
    E.drain()
    for i in range(8):
        E.ds(f"ds_read_b128 {vr(WB+4*i,4)}, v{WA} offset:{(8+i)*1024}", rng(WB + 4 * i, 4))
    for i in range(2):
        E.ds(f"ds_read_b128 {vr(WC+4*i,4)}, v{WA} offset:{(16+i)*1024}", rng(WC + 4 * i, 4))
    for i in range(16): E(f"v_mov_b32 v{H+i}, 0")
    for i in range(8): E(f"v_mov_b32 v{S+i}, 0")
    E.drain()
    for i in range(8):
        E.ds(f"ds_read_b128 {vr(WV+4*i,4)}, v{WA} offset:{(18+i)*1024}", rng(WV + 4 * i, 4))
    E(mfma(Z0, OH, xa(0, 0), None))
    E(mfma(Z0, OH + 4, xa(1, 0), Z0))
    E("s_waitcnt vmcnt(5)")
    rd_e(E, 0)
    for s in range(4): rd_x(E, s, 0)
    E.need(rng(EE, 4))
    E(mfma(Z0, EE, wc(0), Z0))
    for s in range(4):
        E.need(rng(X + 4 * s, 4))
        E(mfma(Z0, X + 4 * s, wb(s, 0), Z0))
    assert not E.pend
    for g in dma_tile(E, 0):
        for i in g: E(i)
    E.label("M_loop")
    tile_body(E, 0, opt)
    E(f"s_sub_u32 s{S_NT}, s{S_NT}, 1")
    E(f"s_cmp_eq_u32 s{S_NT}, 0")
    E("s_cbranch_scc1 M_drain")
    tile_body(E, 1, opt)
    E(f"s_sub_u32 s{S_NT}, s{S_NT}, 1")
    E(f"s_cmp_lg_u32 s{S_NT}, 0")
    E("s_cbranch_scc1 M_loop")
    E.label("M_drain")
    for i in range(8): E(f"v_cvt_pk_bf16_f32 v{MSG+i}, v{H+2*i}, v{H+2*i+1}")
    E("s_nop 1")
    E(mfma(ACC + 16, S, MSG, ACC + 16))
    E(mfma(ACC + 16, S + 4, MSG + 4, ACC + 16))
    E.label("M_exit")
    E(f"s_cmp_eq_u32 s{S_SLOW}, 0")
    E("s_cbranch_scc1 M_epi")
    E("s_waitcnt vmcnt(0) lgkmcnt(0)")
    E(f"s_add_u32 s{S_J}, s{S_J}, 1")
    E(f"s_cmp_ge_u32 s{S_J}, s{S_MAX}")
    E("s_cbranch_scc1 M_epi")
    E.label("M_batch")
    E("s_nop 7")
    E("s_nop 7")
    E("s_barrier")
    reset_cnt()
    E(f"v_and_b32 v{ST}, 0xfffff, v{VT}")
    E(f"v_lshrrev_b32 v{CN}, 20, v{VT}")
    E(f"v_add_u32 v{ST}, s{S_J}, v{ST}")
    E(f"v_lshlrev_b32 v{RA}, 2, v{ST}")
    E(f"s_mov_b32 s11, {REC_OFF}")
    E(f"buffer_load_dword v{H}, v{RA}, s[{S_WS}:{S_WS+3}], s11 offen")
    E(f"v_mov_b32 v{E8}, 8")
    E(f"v_cmp_lt_u32 vcc, s{S_J}, v{CN}")
    E("s_waitcnt vmcnt(0) lgkmcnt(0)")
    E("s_barrier")
    E("s_mov_b64 exec, vcc")
    E(f"v_lshrrev_b32 v{Z0}, 27, v{H}")
    E(f"ds_add_rtn_u32 v{Z1}, v{Z0}, v{E8} offset:{CNT}")
    E("s_waitcnt lgkmcnt(0)")
    E(f"ds_write2_b32 v{Z1}, v{H}, v{ST} offset0:0 offset1:1")
    E("s_mov_b64 exec, -1")
    E("s_waitcnt lgkmcnt(0)")
    E("s_barrier")
    E("s_branch M_entry")
    E.label("M_slowinit")
    E(f"s_mov_b32 s{S_SLOW}, 1")
    E(f"s_mov_b32 s{S_J}, 0")
    E(f"v_lshrrev_b32 v{CN}, 20, v{VT}")
    E(f"v_mov_b32 v{Z0}, 0")
    E(f"ds_max_u32 v{Z0}, v{CN} offset:{MAXC}")
    E("s_waitcnt lgkmcnt(0)")
    E("s_barrier")
    E(f"ds_read_b32 v{Z0+1}, v{Z0} offset:{MAXC}")
    E("s_waitcnt lgkmcnt(0)")
    E(f"v_readfirstlane_b32 s{S_MAX}, v{Z0+1}")
    E("s_branch M_batch")
    E.label("M_epi")
    E(f"s_mov_b32 s10, {NLOG2E}")
    E(f"v_and_b32 v{TMP}, 31, v{TID}")
    E(f"v_lshlrev_b32 v{TMP}, 2, v{TMP}")
    E(f"v_and_b32 v{TMP+1}, 32, v{TID}")
    E(f"v_lshl_add_u32 v{TMP}, v{TMP+1}, 4, v{TMP}")
    E(f"s_lshl_b32 s11, s{S_NODE}, 7")
    E("s_nop 7")
    regs = [ACC + r for r in range(13)] + [ACC + 16 + r for r in range(13)]
    tmp = {a: Z0 + (a - ACC) for a in regs}
    for a in regs: E(f"v_mul_f32 v{tmp[a]}, s10, v{a}")
    for a in regs: E(f"v_exp_f32 v{tmp[a]}, v{tmp[a]}")
    for a in regs: E(f"v_add_f32 v{tmp[a]}, 1.0, v{tmp[a]}")
    for a in regs: E(f"v_rcp_f32 v{tmp[a]}, v{tmp[a]}")
    for a in regs: E(f"v_mul_f32 v{a}, v{a}, v{tmp[a]}")
    for r in range(13):
        E(f"v_cvt_pk_bf16_f32 v{H+r}, v{ACC+r}, v{ACC+16+r}")
        if r < 12:
            E(f"buffer_store_dword v{H+r}, v{TMP}, s[{S_OUT}:{S_OUT+3}], s11 offen offset:{((r&3)+8*(r>>2))*128}")
    E(f"s_cmp_lt_u32 s{S_WAVE}, 4")
    E("s_cbranch_scc0 M_end")
    E("s_mov_b32 exec_hi, 0")
    E(f"buffer_store_dword v{H+12}, v{TMP}, s[{S_OUT}:{S_OUT+3}], s11 offen offset:{24*128}")
    E.label("M_end")
    E("s_endpgm")

def desc(name, vgpr, sgpr=102):
    acc = (vgpr + 3) // 4 * 4
    return [".p2align 6", f".amdhsa_kernel {name}", f"  .amdhsa_next_free_vgpr {vgpr}",
            f"  .amdhsa_next_free_sgpr {sgpr}", f"  .amdhsa_accum_offset {acc}",
            "  .amdhsa_group_segment_fixed_size 0", "  .amdhsa_kernarg_size 80",
            "  .amdhsa_user_sgpr_count 2", "  .amdhsa_user_sgpr_kernarg_segment_ptr 1",
            "  .amdhsa_system_sgpr_workgroup_id_x 1", ".end_amdhsa_kernel"]

def generate(opt):
    ref = open(f"cdna_kernels/{NAME}.s.ref").read().split("\n")
    hdr = [l for l in ref if l.startswith(";") and "@launch" not in l and "Override" not in l and "Harness parses" not in l]
    out = hdr[:]
    out.append(f"; @launch kernel=part_kernel grid=({NCH},1,1) block=(512,1,1) lds={K1_LDS}")
    out.append(f"; @launch kernel={NAME}_kernel grid=(256,1,1) block=(512,1,1) lds={K2_LDS}")
    out.append('.amdgcn_target "amdgcn-amd-amdhsa--gfx950"')
    out.append(".text")
    for nm, fn in (("part_kernel", gen_k1), (NAME + "_kernel", gen_k2)):
        out += [f".globl {nm}", ".p2align 8", f".type {nm},@function"]
        E = Em(); fn(E, opt); out += E.L
    out.append('.section .rodata,"a"')
    out += desc("part_kernel", 64)
    out += desc(NAME + "_kernel", K2_VGPR)
    return "\n".join(out) + "\n"

if __name__ == "__main__":
    opt = {}
    path = f"cdna_kernels/{NAME}.s"
    for a in sys.argv[1:]:
        k, v = a.split("=", 1)
        if k == "out": path = v
        else:
            try: v = eval(v)
            except Exception: pass
            opt[k] = v
    open(path, "w").write(generate(opt))
    print("wrote", path)
```

```python
import sys, re

NAME = "gather_scatter__edge_featured_mpnn_egc__graph"
N_NODES = 50000
N_EDGES = 800000
CH = 1564
NCH = 512
WF_OFF = 0
T_OFF = 0x10000
REC_OFF = 0x100000
EP_OFF = 0x800000
NLOG2E = 0xBFB8AA3B

class Em:
    def __init__(self):
        self.L = []
        self.pend = []
    def __call__(self, s):
        self.L.append("    " + s)
    def label(self, s):
        self.L.append(s + ":")
    def c(self, s):
        self.L.append("    ; " + s)
    def ds(self, s, dst=()):
        self(s)
        self.pend.append(set(dst))
        assert len(self.pend) <= 15, "too many outstanding LDS ops"
    def need(self, regs):
        regs = set(regs)
        last = -1
        for i, d in enumerate(self.pend):
            if d & regs:
                last = i
        if last >= 0:
            n = len(self.pend) - 1 - last
            self(f"s_waitcnt lgkmcnt({n})")
            self.pend = self.pend[last + 1:]
    def drain(self):
        self("s_waitcnt lgkmcnt(0)")
        self.pend = []

PROF_OFF = 0x4000000
def stamp(E, opt, i, only=None):
    if opt.get("prof") and (only is None or opt.get("prof") == only):
        E(f"s_memrealtime s[{76+2*i}:{77+2*i}]")
        E(f"s_memtime s[94:95]")
        E("s_waitcnt lgkmcnt(0)")
        E(f"s_mov_b32 s{77+2*i}, s94")
        E.pend = []
def prof_out(E, opt, wslo, wavereg, base, n, extra=None):
    if not opt.get("prof"): return
    E("s_waitcnt vmcnt(0)")
    stamp(E, opt, n - 1)
    E("s_mov_b64 exec, 1")
    E(f"s_mov_b32 s96, s{wslo}")
    E(f"s_mov_b32 s97, s{wslo+1}")
    E(f"s_mov_b32 s98, {PROF_OFF + 0x200000}")
    E("s_mov_b32 s99, 0x20000")
    E("s_lshl_b32 s100, s2, 3")
    E(f"s_add_u32 s100, s100, s{wavereg}")
    E("s_lshl_b32 s100, s100, 6")
    E(f"s_add_u32 s100, s100, {PROF_OFF + base}")
    E("v_mov_b32 v1, 0")
    for i in range(n):
        E(f"v_mov_b32 v2, s{76+2*i}")
        E(f"buffer_store_dword v2, v1, s[96:99], s100 offen offset:{4*i}")
        if i < 7:
            E(f"v_mov_b32 v2, s{77+2*i}")
            E(f"buffer_store_dword v2, v1, s[96:99], s100 offen offset:{32+4*i}")
    if extra is not None:
        E(f"v_mov_b32 v2, s{extra}")
        E(f"buffer_store_dword v2, v1, s[96:99], s100 offen offset:60")

def vr(a, n=1):
    return f"v{a}" if n == 1 else f"v[{a}:{a+n-1}]"
def sr(a, n=1):
    return f"s{a}" if n == 1 else f"s[{a}:{a+n-1}]"
def rng(a, n):
    return list(range(a, a + n))

def srd(E, d, lo, hi, nrec, stride=0):
    E(f"s_mov_b32 s{d}, s{lo}")
    if stride:
        E(f"s_or_b32 s{d+1}, s{hi}, {stride << 16}")
    else:
        E(f"s_mov_b32 s{d+1}, s{hi}")
    E(f"s_mov_b32 s{d+2}, {nrec}")
    E(f"s_mov_b32 s{d+3}, 0x20000")

K1_SLAB = 0
K1_HIST = 50176
K1_PREF = 51200
K1_RECL = 52224
K1_INVL = 58624
K1_LDS = 65024

def gen_k1(E, opt):
    st = opt.get("k1_store_flags", "")
    lf = opt.get("k1_load_flags", "")
    direct = 1
    U = 8 if direct else 4
    USH = 3 if direct else 2
    E.label("part_kernel")
    E(f"s_cmp_ge_u32 s2, {NCH}")
    E("s_cbranch_scc1 P_end")
    stamp(E, opt, 0)
    E("s_load_dwordx4 s[4:7], s[0:1], 8")
    E("s_load_dwordx2 s[8:9], s[0:1], 24")
    E("s_load_dwordx2 s[10:11], s[0:1], 72")
    E("s_load_dwordx4 s[44:47], s[0:1], 32")
    E("s_load_dwordx2 s[48:49], s[0:1], 48")
    E("s_load_dwordx2 s[72:73], s[0:1], 0")
    if opt.get("pf1"):
        per = (opt["pf1"] + 63) // 64
        E("s_lshr_b32 s75, s2, 3")
        E(f"s_mul_i32 s75, s75, {per*128}")
        E(f"s_add_u32 s74, s75, {per*128}")
        E(f"s_min_u32 s74, s74, {N_NODES*128}")
    E("s_and_b32 s3, s2, 7")
    E("s_lshl_b32 s3, s3, 6")
    E("s_lshr_b32 s36, s2, 3")
    E("s_add_u32 s3, s3, s36")
    E(f"s_mul_i32 s36, s3, {CH}")
    E(f"s_add_u32 s37, s36, {CH}")
    E(f"s_min_u32 s37, s37, {N_EDGES}")
    E("v_lshrrev_b32 v1, 6, v0")
    E("v_lshlrev_b32 v2, 4, v0")
    E("v_readfirstlane_b32 s38, v1")
    E("v_lshlrev_b32 v3, 2, v0")
    E("v_mov_b32 v12, 0")
    E("v_and_b32 v3, 0x3fc, v3")
    E(f"ds_write_b32 v3, v12 offset:{K1_HIST}")
    E("s_lshl_b32 s39, s36, 2")
    E("s_lshl_b32 s40, s36, 5")
    E("s_lshl_b32 s41, s37, 2")
    E("s_lshl_b32 s42, s37, 5")
    E("s_waitcnt lgkmcnt(0)")
    srd(E, 12, 8, 9, "s41")
    srd(E, 16, 6, 7, "s41")
    srd(E, 20, 4, 5, "s42")
    E(f"buffer_load_dwordx4 v[4:7], v2, s[12:15], s39 offen {lf}")
    E(f"buffer_load_dwordx4 v[8:11], v2, s[16:19], s39 offen {lf}")
    if not direct:
        E("s_lshl_b32 s43, s38, 10")
        for k in range(6):
            E(f"s_add_u32 m0, s43, {k*8192}")
            E(f"s_add_u32 s50, s40, {k*8192}")
            E(f"buffer_load_dwordx4 v2, s[20:23], s50 offen {lf} lds")
        E("s_cmp_lg_u32 s38, 0")
        E("s_cbranch_scc1 P_nodma7")
        E(f"s_mov_b32 m0, {6*8192}")
        E(f"s_add_u32 s50, s40, {6*8192}")
        E(f"buffer_load_dwordx4 v2, s[20:23], s50 offen {lf} lds")
        E.label("P_nodma7")
    E(f"s_add_u32 s51, s42, {EP_OFF}")
    srd(E, 24, 10, 11, "s51")
    E(f"s_lshl_b32 s51, s37, {USH}")
    E(f"s_add_u32 s51, s51, {REC_OFF}")
    srd(E, 28, 10, 11, "s51")
    srd(E, 32, 10, 11, REC_OFF)
    E("s_cmp_eq_u32 s38, 7")
    E("s_cselect_b32 s52, s2, 100")
    E("s_cmp_lt_u32 s52, 17")
    E("s_cbranch_scc0 P_noprep1")
    E("s_mov_b32 s56, s48")
    E("s_mov_b32 s57, s49")
    E("s_mov_b32 s58, 18432")
    E("s_mov_b32 s59, 0x20000")
    E("s_lshl_b32 s53, s52, 11")
    E("s_cmp_lt_u32 s52, 9")
    E("s_cbranch_scc1 P_prepld")
    E("s_mov_b32 s56, s46")
    E("s_mov_b32 s57, s47")
    E("s_mov_b32 s58, 8192")
    E(f"s_sub_u32 s53, s53, {9*2048}")
    E("s_cmp_lt_u32 s52, 13")
    E("s_cbranch_scc1 P_prepld")
    E("s_mov_b32 s56, s44")
    E("s_mov_b32 s57, s45")
    E(f"s_sub_u32 s53, s53, {4*2048}")
    E.label("P_prepld")
    E("v_and_b32 v40, 31, v0")
    E("v_lshlrev_b32 v40, 2, v40")
    E("v_and_b32 v41, 32, v0")
    E("v_lshlrev_b32 v41, 5, v41")
    E("v_add_u32 v40, v40, v41")
    for j in range(8):
        E(f"buffer_load_dword v{44+j}, v40, s[56:59], s53 offen offset:{j*128}")
    E.label("P_noprep1")
    E("s_barrier")
    E("s_sub_u32 s54, s41, s39")
    E("v_cmp_gt_u32 vcc, s54, v2")
    E("s_mov_b32 s60, 85599")
    E(f"s_mov_b32 s61, {80 << 16}")
    E(f"v_mov_b32 v13, {(-(2000 << 16)) & 0xffffffff}")
    E(f"v_mov_b32 v14, {U}")
    E(f"s_mov_b32 s66, {1 << 28}")
    E(f"s_mov_b32 s67, {1 << 29}")
    E("v_lshlrev_b32 v36, 2, v0")
    E("v_add_u32 v36, s36, v36")
    for j in range(1, 4):
        E(f"v_add_u32 v{36+j}, {j}, v36")
    npf = 0
    if opt.get("pf1"):
        per = (opt["pf1"] + 63) // 64
        assert per <= 512
        srd(E, 68, 72, 73, "s74")
        E("v_lshlrev_b32 v60, 7, v0")
        E(f"buffer_load_dword v61, v60, s[68:71], s75 offen {opt.get('pf_flags','')}")
        npf = 1
    E("s_and_saveexec_b64 s[62:63], vcc")
    E("s_cbranch_execz P_nohist")
    E("s_mov_b64 s[64:65], exec")
    E("s_waitcnt vmcnt(%d)" % npf)
    for j in range(4):
        E(f"v_mul_u32_u24 v{16+j}, s60, v{4+j}")
    for j in range(4):
        E(f"v_lshrrev_b32 v{16+j}, 22, v{16+j}")
    E("v_mov_b32 v15, -49")
    for j in range(4):
        E(f"v_mad_i32_i24 v{4+j}, v{16+j}, v15, v{4+j}")
        E(f"v_lshl_add_u32 v{36+j}, v{16+j}, 30, v{36+j}")
        E(f"v_and_b32 v{16+j}, 0x3fc, v{16+j}")
        E(f"ds_add_rtn_u32 v{20+j}, v{16+j}, v14 offset:{K1_HIST}")
    for j in range(4):
        E(f"v_subrev_u32 v{24+j}, {opt.get('thr', 25000)}, v{8+j}")
        if opt.get("xmask"): E(f"v_and_b32 v{8+j}, {opt['xmask']}, v{8+j}")
        E(f"v_mad_u32_u24 v{8+j}, v{4+j}, s61, v{8+j}")
        E(f"v_sub_u32 v{4+j}, 24, v{4+j}")
        E(f"v_and_or_b32 v{36+j}, v{24+j}, s66, v{36+j}")
        E(f"v_and_or_b32 v{36+j}, v{4+j}, s67, v{36+j}")
        E(f"v_and_b32 v{4+j}, v{4+j}, v13")
        E(f"v_add_u32 v{8+j}, v{8+j}, v{4+j}")
    E.label("P_nohist")
    E("s_mov_b64 exec, -1")
    E("v_and_b32 v1, 63, v0")
    E("v_lshlrev_b32 v1, 4, v1")
    E("s_waitcnt lgkmcnt(0)")
    E("s_barrier")
    stamp(E, opt, 1)
    E(f"ds_read_b128 v[24:27], v1 offset:{K1_HIST}")
    E("s_waitcnt lgkmcnt(0)")
    E("v_add_u32 v29, v24, v25")
    E("v_add_u32 v30, v29, v26")
    E("v_add_u32 v31, v30, v27")
    E("v_mov_b32 v28, v31")
    E("s_nop 1")
    for sh in (1, 2, 4, 8):
        E(f"v_add_u32_dpp v28, v28, v28 row_shr:{sh} row_mask:0xf bank_mask:0xf")
        E("s_nop 1")
    E("v_add_u32_dpp v28, v28, v28 row_bcast:15 row_mask:0xa bank_mask:0xf")
    E("s_nop 1")
    E("v_add_u32_dpp v28, v28, v28 row_bcast:31 row_mask:0xc bank_mask:0xf")
    E("s_nop 1")
    E("v_sub_u32 v32, v28, v31")
    E("v_add_u32 v33, v32, v24")
    E("v_add_u32 v34, v32, v29")
    E("v_add_u32 v35, v32, v30")
    E("s_cmp_eq_u32 s38, 7")
    E("s_cbranch_scc1 P_w7")
    E(f"ds_write_b128 v1, v[32:35] offset:{K1_PREF}")
    E("s_sub_u32 s54, s41, s39")
    E("v_cmp_gt_u32 vcc, s54, v2")
    E("s_and_saveexec_b64 s[62:63], vcc")
    E("s_cbranch_execz P_join")
    for j in range(4):
        E(f"ds_read_b32 v{16+j}, v{16+j} offset:{K1_PREF}")
    for j in range(4):
        E(f"s_waitcnt lgkmcnt(3)")
        E(f"v_add_u32 v{16+j}, v{16+j}, v{20+j}")
        E(f"ds_write2_b32 v{16+j}, v{8+j}, v{36+j} offset0:0 offset1:1")
    E("s_branch P_join")
    E.label("P_w7")
    for j in range(4):
        E(f"v_lshrrev_b32 v{32+j}, {USH}, v{32+j}")
        E(f"v_lshl_add_u32 v{32+j}, v{24+j}, {20-USH}, v{32+j}")
        E(f"v_add_u32 v{32+j}, s36, v{32+j}")
    E(f"s_mul_i32 s55, s3, {opt.get('tstride',1024)}")
    E(f"s_add_u32 s55, s55, {T_OFF}")
    E(f"buffer_store_dwordx4 v[32:35], v1, s[32:35], s55 offen {st}")
    E("s_cmp_lt_u32 s52, 17")
    E("s_cbranch_scc0 P_join")
    E("s_sub_u32 s54, s52, 4")
    E("s_cmp_lt_u32 s54, 5")
    E(f"s_cselect_b32 s54, {NLOG2E}, 1.0")
    E("s_waitcnt vmcnt(1)")
    for j in range(8):
        E(f"v_lshlrev_b32 v{52+j}, 16, v{44+j}")
        E(f"v_and_b32 v{44+j}, 0xffff0000, v{44+j}")
    for j in range(16):
        E(f"v_mul_f32 v{44+j}, s54, v{44+j}")
    for j in range(4):
        E(f"v_cvt_pk_bf16_f32 v{36+j}, v{52+2*j}, v{53+2*j}")
        E(f"v_cvt_pk_bf16_f32 v{40+j}, v{44+2*j}, v{45+2*j}")
    E("s_lshl_b32 s53, s52, 11")
    E(f"buffer_store_dwordx4 v[36:39], v1, s[32:35], s53 offen")
    E(f"buffer_store_dwordx4 v[40:43], v1, s[32:35], s53 offen offset:1024")
    E.label("P_join")
    E("s_mov_b64 exec, -1")
    E("v_lshrrev_b32 v3, 1, v0")
    E("v_lshlrev_b32 v3, 2, v3")
    E("v_and_b32 v1, 1, v0")
    E("v_lshlrev_b32 v1, 4, v1")
    E("s_mov_b32 s60, 0xffe0")
    E("s_waitcnt lgkmcnt(0)")
    stamp(E, opt, 2)
    E("s_barrier")
    stamp(E, opt, 3)
    if direct:
        E("ds_read_b128 v[16:19], v2")
        E("ds_read_b128 v[20:23], v2 offset:8192")
        E(f"s_lshl_b32 s50, s36, 3")
        E(f"s_add_u32 s50, s50, {REC_OFF}")
        E(f"s_add_u32 s51, s50, 8192")
        E("s_waitcnt lgkmcnt(1)")
        E(f"buffer_store_dwordx4 v[16:19], v2, s[28:31], s50 offen {st}")
        E("s_waitcnt lgkmcnt(0)")
        E(f"buffer_store_dwordx4 v[20:23], v2, s[28:31], s51 offen {st}")
        stamp(E, opt, 4)
        prof_out(E, opt, 10, 38, 0, 6)
        E.label("P_end")
        E("s_endpgm")
        return
    for k in range(7):
        E(f"ds_read_b32 v{4+k}, v3 offset:{K1_INVL + k*1024}")
    E(f"ds_read_b128 v[44:47], v2 offset:{K1_RECL}")
    for k in range(7):
        E(f"s_waitcnt lgkmcnt(7)")
        E(f"v_and_or_b32 v{4+k}, v{4+k}, s60, v1")
        E(f"ds_read_b128 v[{16+4*k}:{19+4*k}], v{4+k}")
    E(f"s_add_u32 s50, s39, {REC_OFF}")
    E("s_waitcnt lgkmcnt(7)")
    E(f"buffer_store_dwordx4 v[44:47], v2, s[28:31], s50 offen {st}")
    for k in range(7):
        E(f"s_add_u32 s50, s40, {EP_OFF + k*8192}")
        E(f"s_waitcnt lgkmcnt({6-k})")
        E(f"buffer_store_dwordx4 v[{16+4*k}:{19+4*k}], v2, s[24:27], s50 offen {st}")
    stamp(E, opt, 4)
    prof_out(E, opt, 10, 38, 0, 6)
    E.label("P_end")
    E("s_endpgm")

TZ = 0
TS = 2560
CNT = 5120
MAXC = 5184
ER = 5376
XR = 21760
WST = 87296
LIST = 122112
LCAP = 640
K2_LDS = 163840
CEN0 = 288

WB = 0
WV = 32
WC = 64
XA = 72
ACC = 88
Z0 = 120
Z1 = 136
H = 152
X = 168
EE = 184
OH = 188
S = 196
MSG = 204
XP = 212
EPR = 220
DZ = 222
CZ = 223
DS = 224
CS = 228
XAD = 229
EAD = 233
LPX = 234
LPE = 235
LPZ = 236
LPS = 237
VT = 238
TID = 239
TMP = 240
K2_VGPR = 248

def wb(s, f): return WB + (s * 2 + f) * 4
def wv(s, f): return WV + (s * 2 + f) * 4
def wc(f): return WC + f * 4
def xa(s, f): return XA + (s * 2 + f) * 4
def zb(f): return Z1 if f else Z0

def mfma(d, a, b, c):
    cs = "0" if c is None else vr(c, 16)
    return f"v_mfma_f32_32x32x16_bf16 {vr(d,16)}, {vr(a,4)}, {vr(b,4)}, {cs}"

S_X = 12
S_EP = 16
S_WS = 20
S_OUT = 24
S_WAVE = 28
S_G = 29
S_NT = 30
S_XR = 31
S_ER = 32
S_SLOW = 33
S_J = 34
S_MAX = 35
S_NODE = 36
S_LB = 37
S_T0 = 38
S_T1 = 39
S_MASK = 40
S_INIT = 75

EFLAGS = ""
EMASK = 0x1fffff
def dma_tile(E, slot, spacer=None):
    out = []
    out.append([f"s_add_u32 m0, s{S_ER}, {slot*1024}", "s_nop 0",
                f"buffer_load_dwordx4 {vr(EPR,2)}, s[{S_EP}:{S_EP+3}], 0 idxen offen {EFLAGS} lds"])
    for i in range(4):
        out.append([f"s_add_u32 m0, s{S_XR}, {slot*4096 + i*1024}", "s_nop 0",
                    f"buffer_load_dwordx4 {vr(XP+2*i,2)}, s[{S_X}:{S_X+3}], 0 idxen offen lds"])
    return out

def rd_list_dma(E, trel):
    E.ds(f"ds_read_b32 v{EPR}, v{LPE} offset:{trel*256}", [EPR])
    for i in range(4):
        E.ds(f"ds_read_u16 v{XP+2*i}, v{LPX} offset:{trel*256 + i*64}", [XP + 2 * i])

def rd_x(E, s, slot):
    E.ds(f"ds_read_b128 {vr(X+4*s,4)}, v{XAD+s} offset:{slot*4096}", rng(X + 4 * s, 4))
def rd_e(E, slot):
    E.ds(f"ds_read_b128 {vr(EE,4)}, v{EAD} offset:{slot*1024}", rng(EE, 4))
def rd_oh(E, s):
    E.ds(f"ds_read_b128 {vr(OH+4*s,4)}, v{DZ} offset:{s*32}", rng(OH + 4 * s, 4))
def rd_s(E, w):
    E.ds(f"ds_read_b64_tr_b16 {vr(S+2*w,2)}, v{DS+w}", rng(S + 2 * w, 2))
def rd_dz(E, trel):
    E.ds(f"ds_read_u16 v{DZ}, v{LPZ} offset:{trel*256}", [DZ])
def rd_ds(E, trel, w):
    E.ds(f"ds_read_u16 v{DS+w}, v{LPS} offset:{trel*256 + w*64}", [DS + w])

SH16 = {}
def tile_body(E, par, opt):
    prio = opt.get("prio", True)
    def P(n):
        if prio: E(f"s_setprio {n}")
    def M(d, a, b, c):
        E.need(rng(a, 4)); E.need(rng(b, 4))
        if opt.get("halfx") and a in (X + 4, X + 12): return
        if opt.get("nox") and a in (X + 4, X + 8, X + 12): return
        if opt.get("nox") and a == X and d != H: return
        if opt.get("shape16"):
            st = SH16.setdefault(d, [0, 0])
            if c is None: st[0] = 0; st[1] = 2
            for q in range(2):
                blk = d + 4 * (2 * st[0] + q)
                bb = b if q == 0 else (b ^ 8 if b < 64 else b ^ 4)
                cs = "0" if st[1] > 0 else vr(blk, 4)
                E(f"v_mfma_f32_16x16x32_bf16 {vr(blk,4)}, {vr(a,4)}, {vr(bb,4)}, {cs}")
            st[0] ^= 1
            if st[1] > 0: st[1] -= 1
            return
        if opt.get("nooh") and a == OH + 4: return
        E(mfma(d, a, b, c))
    for f in (0, 1):
        z = zb(f); zn = zb(f ^ 1); fn = f ^ 1
        ex = [f"v_exp_f32 v{z+i}, v{z+i}" for i in range(16)]
        rc = [f"v_rcp_f32 v{z+i}, v{z+i}" for i in range(16)]
        if opt.get("notrans"):
            ex = [f"v_mov_b32 v{z+i}, v{z+i}" for i in range(16)]; rc = ex
        cv = [f"v_cvt_pk_bf16_f32 v{MSG+i}, v{H+2*i}, v{H+2*i+1}" for i in range(8)]
        E.c(f"---- slot f={f} par={par} T1")
        P(1)
        M(zn, EE, wc(fn), None)
        if f == 0:
            rd_dz(E, par + 1)
        else:
            for w in range(4): rd_ds(E, par + 1, w)
        for i in range(4): E(cv[i])
        E(ex[0])
        M(zn, OH, xa(0, fn), zn)
        for i in range(4, 8): E(cv[i])
        E(ex[1])
        k = 2
        if f == 1: E("s_waitcnt vmcnt(%d)" % {0:5,1:5,2:4,3:1}[opt.get("nodma",0)])
        for s in range(4):
            M(H, X + 4 * s, wv(s, f), None if s == 0 else H)
            if f == 1: rd_x(E, s, par ^ 1)
            for i in range(3): E(ex[k]); k += 1
        M(ACC + 16 * fn, S, MSG, ACC + 16 * fn)
        E(ex[k]); E(ex[k + 1])
        M(ACC + 16 * fn, S + 4, MSG + 4, ACC + 16 * fn)
        if f == 0:
            for w in range(4): rd_s(E, w)
        E.c("P1")
        P(0)
        if opt.get("pk", 0) & 1:
            for i in range(8): E(f"v_pk_add_f32 {vr(z+2*i,2)}, {vr(z+2*i,2)}, 1.0 op_sel_hi:[1,0]")
        else:
            for i in range(16): E(f"v_add_f32 v{z+i}, 1.0, v{z+i}")
        if f == 0:
            E.need([DZ])
            E(f"v_add_u32 v{DZ}, v{DZ}, v{CZ}")
        else:
            E.need([EPR])
            E(f"v_and_b32 v{EPR}, {EMASK}, v{EPR}")
        E.c("T2")
        P(1)
        M(zn, OH + 4, xa(1, fn), zn)
        if f == 0:
            E("s_waitcnt vmcnt(%d)" % {0:9,1:9,2:8,3:1}[opt.get("nodma",0)])
            rd_e(E, par ^ 1); rd_oh(E, 0); rd_oh(E, 1)
            rd_list_dma(E, par + 3)
        k = 0
        for i in range(3): E(rc[k]); k += 1
        for s in range(4):
            M(zn, X + 4 * s, wb(s, fn), zn)
            if s < 3:
                for i in range(3): E(rc[k]); k += 1
        if f == 1:
            assert not E.pend
            g = dma_tile(E, par ^ 1)
            for q in range(5):
                E(g[q][0])
                if k < 16: E(rc[k]); k += 1
                else: E("s_nop 0")
                if not (opt.get("nodma") == 1 or (opt.get("nodma") == 2 and q == 0) or (opt.get("nodma") == 3 and q > 0)): E(g[q][2])
        while k < 16: E(rc[k]); k += 1
        E.c("P2")
        P(0)
        if f == 1:
            for w in range(4): E(f"v_add_u32 v{DS+w}, v{DS+w}, v{CS}")
            if par == 1:
                for r in (LPX, LPE, LPZ, LPS): E(f"v_add_u32 v{r}, 512, v{r}")
        if opt.get("pk", 0) & 2:
            for i in range(8): E(f"v_pk_mul_f32 {vr(H+2*i,2)}, {vr(H+2*i,2)}, {vr(z+2*i,2)}")
        else:
            for i in range(16): E(f"v_mul_f32 v{H+i}, v{H+i}, v{z+i}")
    assert not E.pend

def gen_k2(E, opt):
    E.label(NAME + "_kernel")
    E("s_cmp_ge_u32 s2, 256")
    E("s_cbranch_scc1 M_end")
    stamp(E, opt, 0, 1)
    direct = 1
    E("s_load_dwordx2 s[4:5], s[0:1], 0")
    E("s_load_dwordx2 s[72:73], s[0:1], 8")
    E("s_load_dwordx2 s[6:7], s[0:1], 56")
    E("s_load_dwordx2 s[8:9], s[0:1], 72")
    E(f"v_mov_b32 v{TID}, v0")
    E(f"v_lshrrev_b32 v{TMP}, 6, v0")
    E("s_and_b32 s3, s2, 7")
    E("s_lshl_b32 s3, s3, 5")
    E(f"v_readfirstlane_b32 s{S_WAVE}, v{TMP}")
    E("s_lshr_b32 s10, s2, 3")
    E("s_add_u32 s3, s3, s10")
    L = TMP + 1
    E(f"v_and_b32 v{L}, 63, v{TID}")
    E(f"v_mul_u32_u24 v{TMP+2}, {opt.get('tstride',1024)}, v{TID}")
    E(f"s_and_b32 s10, s{S_WAVE}, 3")
    E(f"s_lshr_b32 s11, s{S_WAVE}, 2")
    E(f"s_lshl_b32 s{S_G}, s10, 1")
    E(f"s_add_u32 s{S_G}, s{S_G}, s11")
    E(f"s_lshl_b32 s{S_T0}, s3, 2")
    E(f"s_add_u32 s10, s10, s{S_T0}")
    E(f"s_mul_i32 s10, s10, 49")
    E(f"s_mul_i32 s11, s11, 25")
    E(f"s_add_u32 s{S_NODE}, s10, s11")
    E(f"s_add_u32 s{S_T0}, s{S_T0}, {T_OFF}")
    E("s_waitcnt lgkmcnt(0)")
    srd(E, S_WS, 8, 9, EP_OFF)
    E(f"buffer_load_dword v{VT}, v{TMP+2}, s[{S_WS}:{S_WS+3}], s{S_T0} offen")
    if opt.get("b0", 1): E("s_barrier")
    E(f"v_lshlrev_b32 v{TMP+2}, 4, v{TID}")
    E(f"s_lshl_b32 s10, s{S_WAVE}, 10")
    for k in range(4):
        E(f"s_add_u32 m0, s10, {WST + k*8192}")
        E(f"s_mov_b32 s11, {WF_OFF + k*8192}")
        E(f"buffer_load_dwordx4 v{TMP+2}, s[{S_WS}:{S_WS+3}], s11 offen lds")
    E(f"s_cmp_lt_u32 s{S_WAVE}, 2")
    E("s_cbranch_scc0 M_now5")
    E(f"s_add_u32 m0, s10, {WST + 4*8192}")
    E(f"s_mov_b32 s11, {WF_OFF + 4*8192}")
    E(f"buffer_load_dwordx4 v{TMP+2}, s[{S_WS}:{S_WS+3}], s11 offen lds")
    E.label("M_now5")
    srd(E, S_X, 4, 5, N_NODES, 128)
    E(f"v_and_b32 v{TMP+2}, 31, v{L}")
    E(f"v_lshrrev_b32 v{TMP+3}, 5, v{L}")
    E(f"v_lshlrev_b32 v{TMP+5}, 4, v{TMP+3}")
    if direct:
        srd(E, S_EP, 72, 73, N_EDGES, 32)
    else:
        E(f"s_add_u32 s{S_EP}, s8, {EP_OFF}")
        E(f"s_addc_u32 s{S_EP+1}, s9, 0")
        E(f"s_or_b32 s{S_EP+1}, s{S_EP+1}, {32 << 16}")
        E(f"s_mov_b32 s{S_EP+2}, {N_EDGES}")
        E(f"s_mov_b32 s{S_EP+3}, 0x20000")
    srd(E, S_OUT, 6, 7, N_NODES * 128)
    E(f"s_mov_b32 s{S_INIT}, 0")
    E(f"s_lshl_b32 s{S_XR}, s{S_WAVE}, 13")
    E(f"s_add_u32 s{S_XR}, s{S_XR}, {XR}")
    E(f"s_lshl_b32 s{S_ER}, s{S_WAVE}, 11")
    E(f"s_add_u32 s{S_ER}, s{S_ER}, {ER}")
    E(f"s_mov_b32 s{S_SLOW}, 0")
    m, h, h16 = TMP + 2, TMP + 3, TMP + 5
    t6, t7 = TMP + 6, TMP + 7
    E(f"s_cmp_eq_u32 s{S_WAVE}, 7")
    E("s_cbranch_scc0 M_notab")
    for i in range(4): E(f"v_mov_b32 v{Z0+i}, 0")
    E(f"v_lshlrev_b32 v{t6}, 4, v{L}")
    for k in range(5):
        E(f"ds_write_b128 v{t6}, {vr(Z0,4)} offset:{TZ + k*1024}")
    E(f"v_and_b32 v{Z0+4}, 0x13, v{m}")
    E(f"v_and_b32 v{Z0+5}, 4, v{m}")
    E(f"v_lshl_add_u32 v{Z0+4}, v{Z0+5}, 1, v{Z0+4}")
    E(f"v_and_b32 v{Z0+5}, 8, v{m}")
    E(f"v_lshrrev_b32 v{Z0+5}, 1, v{Z0+5}")
    E(f"v_add_u32 v{Z0+4}, v{Z0+4}, v{Z0+5}")
    E(f"v_cmp_lt_u32 vcc, 31, v{L}")
    E(f"v_mul_u32_u24 v{Z0+6}, 80, v{L}")
    E(f"v_mov_b32 v{Z0+7}, 0x3f80")
    E(f"v_cndmask_b32 v{Z0+4}, v{Z0+4}, v{m}, vcc")
    E(f"v_cmp_eq_u32 vcc, 31, v{m}")
    E(f"v_lshl_add_u32 v{Z0+6}, v{Z0+4}, 1, v{Z0+6}")
    E("s_nop 0")
    E(f"v_cndmask_b32 v{Z0+7}, v{Z0+7}, v{Z0}, vcc")
    E(f"ds_write_b16 v{Z0+6}, v{Z0+7} offset:{TZ}")
    E.label("M_notab")
    def reset_cnt(cen):
        E(f"v_and_b32 v{Z0+8}, 31, v{TID}")
        E(f"v_lshrrev_b32 v{Z0+9}, 1, v{Z0+8}")
        E(f"v_mul_u32_u24 v{Z0+9}, {LCAP*8}, v{Z0+9}")
        E(f"v_and_b32 v{Z0+10}, 1, v{Z0+8}")
        E(f"v_add_u32 v{Z0+9}, {LIST + cen*8}, v{Z0+9}")
        E(f"v_cmp_eq_u32 vcc, 1, v{Z0+10}")
        E(f"v_sub_u32 v{Z0+10}, 7, v{Z0+9}")
        E("s_nop 0")
        E(f"v_cndmask_b32 v{Z0+9}, v{Z0+9}, v{Z0+10}, vcc")
        E(f"v_cmp_gt_u32 vcc, 16, v{Z0+8}")
        E(f"v_lshlrev_b32 v{Z0+8}, 2, v{Z0+8}")
        E("s_nop 0")
        E(f"v_cndmask_b32 v{Z0+9}, 0, v{Z0+9}, vcc")
        E(f"ds_write_b32 v{Z0+8}, v{Z0+9} offset:{CNT}")
    E(f"s_cmp_eq_u32 s{S_WAVE}, 6")
    E("s_cbranch_scc0 M_nocnt")
    reset_cnt(opt.get('cen', CEN0))
    E.label("M_nocnt")
    E(f"v_lshrrev_b32 v{t6}, 1, v{m}")
    E(f"v_and_b32 v{t6}, 7, v{t6}")
    E(f"v_xor_b32 v{t6}, v{t6}, v{h}")
    E(f"v_lshlrev_b32 v{t7}, 7, v{m}")
    E(f"v_add_u32 v{t7}, s{S_XR}, v{t7}")
    for s in range(4):
        E(f"v_xor_b32 v{XAD+s}, {2*s}, v{t6}")
        E(f"v_lshl_add_u32 v{XAD+s}, v{XAD+s}, 4, v{t7}")
    E(f"v_lshrrev_b32 v{t6}, 3, v{m}")
    E(f"v_and_b32 v{t6}, 1, v{t6}")
    E(f"v_xor_b32 v{t6}, v{t6}, v{h}")
    E(f"v_lshlrev_b32 v{t7}, 5, v{m}")
    E(f"v_add_u32 v{t7}, s{S_ER}, v{t7}")
    E(f"v_lshl_add_u32 v{EAD}, v{t6}, 4, v{t7}")
    E(f"v_and_b32 v{t6}, 7, v{L}")
    E(f"v_lshrrev_b32 v{t7}, 4, v{L}")
    E(f"v_xor_b32 v{t6}, v{t6}, v{t7}")
    E(f"v_lshlrev_b32 v{XP+1}, 4, v{t6}")
    E(f"v_xor_b32 v{XP+3}, 64, v{XP+1}")
    E(f"v_mov_b32 v{XP+5}, v{XP+1}")
    E(f"v_mov_b32 v{XP+7}, v{XP+3}")
    E(f"v_and_b32 v{t6}, 1, v{t6}")
    E(f"v_lshlrev_b32 v{EPR+1}, 4, v{t6}")
    E(f"v_add_u32 v{CZ}, {TZ}, v{h16}")
    E(f"v_and_b32 v{t6}, 16, v{L}")
    E(f"v_lshlrev_b32 v{t6}, 1, v{t6}")
    E(f"v_and_b32 v{t7}, 3, v{L}")
    E(f"v_lshl_add_u32 v{t6}, v{t7}, 3, v{t6}")
    E(f"v_add_u32 v{CS}, {TS}, v{t6}")
    E(f"v_add_u32 v{DS}, s{S_NODE}, v{m}")
    E(f"v_mov_b32 v{DS+1}, v{h16}")
    npf = 0
    if opt.get("pf2"):
        lo, hi = opt.get("pf1", 0), opt.get("pf1", 0) + opt["pf2"]
        per = (opt["pf2"] + 31) // 32
        assert per <= 512
        E("s_lshr_b32 s10, s2, 3")
        E(f"s_mul_i32 s10, s10, {per}")
        E(f"s_add_u32 s10, s10, {lo}")
        E(f"v_cmp_gt_u32 vcc, {per}, v{TID}")
        E(f"v_add_u32 v{DS+2}, s10, v{TID}")
        E(f"v_mov_b32 v{DS+3}, 0xffff")
        E(f"v_cndmask_b32 v{DS+2}, v{DS+3}, v{DS+2}, vcc")
        npf = 1
    E("s_waitcnt vmcnt(4)")
    stamp(E, opt, 1, 1)
    ST, CN = TMP + 6, TMP + 7
    E(f"v_and_b32 v{ST}, 0xfffff, v{VT}")
    E(f"v_lshrrev_b32 v{CN}, 20, v{VT}")
    RA = TMP + 4
    def ent(j):
        return H + 2 * j if j < 8 else EE + 2 * (j - 8)
    def rec_loads():
        if direct:
            E(f"v_lshlrev_b32 v{RA}, 3, v{ST}")
            E(f"s_mov_b32 s11, {REC_OFF}")
            for j in range(16):
                E(f"v_cmp_lt_u32 s[{S_MASK+2*j}:{S_MASK+2*j+1}], {j}, v{CN}")
                if j == 0:
                    E(f"buffer_load_dwordx4 {vr(ent(0),4)}, v{RA}, s[{S_WS}:{S_WS+3}], s11 offen")
                    E(f"buffer_load_dwordx4 {vr(ent(2),4)}, v{RA}, s[{S_WS}:{S_WS+3}], s11 offen offset:16")
            for q in range(2, 8):
                E(f"s_or_b64 exec, s[{S_MASK+4*q}:{S_MASK+4*q+1}], 1")
                E(f"buffer_load_dwordx4 {vr(ent(2*q),4)}, v{RA}, s[{S_WS}:{S_WS+3}], s11 offen offset:{16*q}")
            E("s_mov_b64 exec, -1")
            return
        E(f"v_lshlrev_b32 v{RA}, 2, v{ST}")
        E(f"s_mov_b32 s11, {REC_OFF}")
        for j in range(16):
            E(f"v_cmp_lt_u32 s[{S_MASK+2*j}:{S_MASK+2*j+1}], {j}, v{CN}")
            if j == 0:
                E(f"buffer_load_dwordx4 {vr(H,4)}, v{RA}, s[{S_WS}:{S_WS+3}], s11 offen")
                E(f"buffer_load_dwordx4 {vr(H+4,4)}, v{RA}, s[{S_WS}:{S_WS+3}], s11 offen offset:16")
        E(f"s_or_b64 exec, s[{S_MASK+16}:{S_MASK+17}], 1")
        E(f"buffer_load_dwordx4 {vr(H+8,4)}, v{RA}, s[{S_WS}:{S_WS+3}], s11 offen offset:32")
        E(f"s_or_b64 exec, s[{S_MASK+24}:{S_MASK+25}], 1")
        E(f"buffer_load_dwordx4 {vr(H+12,4)}, v{RA}, s[{S_WS}:{S_WS+3}], s11 offen offset:48")
        E("s_mov_b64 exec, -1")
    rec_loads()
    E("s_waitcnt lgkmcnt(0)")
    E("s_barrier")
    for s_ in range(4):
        E(f"buffer_load_dwordx4 {vr(X+4*s_,4)}, {vr(DS,2)}, s[{S_X}:{S_X+3}], 0 idxen offen offset:{s_*32} {opt.get('xg_flags','')}")
    if npf:
        E(f"buffer_load_dword v{DS+3}, v{DS+2}, s[{S_X}:{S_X+3}], 0 idxen {opt.get('pf_flags','')}")
    stamp(E, opt, 2, 1)
    E8 = TMP + 3
    WA = TMP + 5
    E(f"v_mov_b32 v{E8}, 8")
    E(f"s_mov_b32 s{S_T1}, {LIST}")
    E.label("M_route")
    nq = opt.get("rq", 2)
    per = 16 // nq
    for q in range(nq):
        E(f"s_waitcnt vmcnt({(nq - 1 - q) * per // 2 + 4 + npf})")
        if q == 0: stamp(E, opt, 3, 1)
        js = range(per * q, per * q + per)
        for j in js:
            E(f"s_mov_b64 exec, s[{S_MASK+2*j}:{S_MASK+2*j+1}]")
            E(f"v_lshrrev_b32 v{Z0+j}, 26, v{ent(j)+1}")
            E(f"ds_add_rtn_u32 v{Z1+j}, v{Z0+j}, v{E8} offset:{CNT}")
            E(f"v_bfe_i32 v{Z0+j}, v{ent(j)+1}, 28, 1")
        for k, j in enumerate(js):
            E(f"s_waitcnt lgkmcnt({per - 1})")
            E(f"s_mov_b64 exec, s[{S_MASK+2*j}:{S_MASK+2*j+1}]")
            E(f"v_xor_b32 v{Z1+j}, v{Z1+j}, v{Z0+j}")
            E(f"v_max_i32 v{Z1+j}, s{S_T1}, v{Z1+j}")
            E(f"ds_write_b64 v{Z1+j}, {vr(ent(j),2)}")
        if q < nq - 1 and per == 8: E("s_waitcnt lgkmcnt(7)")
    E("s_mov_b64 exec, -1")
    E(f"v_cmp_lt_u32 vcc, 16, v{CN}")
    E("s_cbranch_vccz M_routed")
    E(f"v_add_u32 v{ST}, 16, v{ST}")
    E(f"v_max_u32 v{CN}, 16, v{CN}")
    E(f"v_subrev_u32 v{CN}, 16, v{CN}")
    E("s_waitcnt lgkmcnt(0)")
    rec_loads()
    E("s_waitcnt vmcnt(0)")
    E("s_branch M_route")
    E.label("M_routed")
    E("s_waitcnt lgkmcnt(0)")
    E("s_barrier")
    stamp(E, opt, 4, 1); stamp(E, opt, 0, 2)
    E.label("M_entry")
    E(f"v_and_b32 v{Z0}, 7, v{TID}")
    E(f"v_lshlrev_b32 v{Z0+1}, 3, v{Z0}")
    E(f"ds_read_b64 {vr(Z0+2,2)}, v{Z0+1} offset:{CNT}")
    E(f"v_and_b32 v{L}, 63, v{TID}")
    E(f"v_and_b32 v{LPX}, 0x38, v{L}")
    E(f"v_lshrrev_b32 v{LPE}, 1, v{L}")
    E(f"v_lshlrev_b32 v{LPE}, 3, v{LPE}")
    E(f"v_and_b32 v{LPZ}, 31, v{L}")
    E(f"v_lshlrev_b32 v{LPZ}, 3, v{LPZ}")
    E(f"v_and_b32 v{LPS}, 12, v{L}")
    E(f"v_lshlrev_b32 v{LPS}, 1, v{LPS}")
    E(f"v_and_b32 v{Z0+4}, 32, v{L}")
    E(f"v_mov_b32 v{Z0+6}, {0xFFFF | ((31*80) << 16)}")
    E(f"v_mov_b32 v{Z0+7}, 0x100000")
    E(f"v_lshlrev_b32 v{Z0+5}, 3, v{L}")
    E(f"v_mov_b32 v{Z0+8}, {LIST - 1024}")
    E(f"s_mov_b32 s11, {K2_LDS - 1024}")
    E("s_waitcnt lgkmcnt(0)")
    E(f"v_sub_u32 v{Z0+3}, 7, v{Z0+3}")
    E(f"v_mov_b32_dpp v{Z0+8}, v{Z0+2} row_shr:1 row_mask:0xf bank_mask:0xf")
    E(f"v_cmp_lt_i32 s[{S_MASK}:{S_MASK+1}], s11, v{Z0+2}")
    E(f"v_readlane_b32 s10, v{Z0+2}, s{S_G}")
    E(f"v_add_u32 v{Z0+8}, 1024, v{Z0+8}")
    E(f"v_readlane_b32 s{S_LB}, v{Z0+3}, s{S_G}")
    E(f"v_cmp_lt_i32 vcc, v{Z0+3}, v{Z0+8}")
    E(f"s_or_b32 s11, vcc_lo, s{S_MASK}")
    E(f"s_and_b32 s11, s11, 0xff")
    E("s_cbranch_scc1 M_slowinit")
    E(f"v_add_u32 v{LPX}, s{S_LB}, v{LPX}")
    E(f"v_add3_u32 v{LPE}, v{LPE}, s{S_LB}, 4")
    E(f"s_sub_u32 s{S_NT}, s10, s{S_LB}")
    E(f"v_add_u32 v{Z0+5}, s10, v{Z0+5}")
    E(f"ds_write_b64 v{Z0+5}, {vr(Z0+6,2)}")
    E(f"ds_write_b64 v{Z0+5}, {vr(Z0+6,2)} offset:512")
    E(f"s_add_u32 s10, s{S_LB}, 2")
    E(f"v_add_u32 v{LPZ}, s10, v{LPZ}")
    E(f"v_add3_u32 v{LPS}, v{LPS}, v{Z0+4}, s10")
    E(f"s_add_u32 s{S_NT}, s{S_NT}, 255")
    E(f"s_lshr_b32 s{S_NT}, s{S_NT}, 8")
    E("s_waitcnt lgkmcnt(0)")
    lead = opt.get("lead", 1)
    def fill(t):
        rd_list_dma(E, t)
        E.need([EPR])
        E(f"v_and_b32 v{EPR}, {EMASK}, v{EPR}")
        for g in dma_tile(E, t):
            reg = int(re.search(r"v\[(\d+):", g[2]).group(1))
            E(g[0]); E.need([reg]); E(g[1]); E(g[2])
    E(f"s_lshr_b32 s10, s{S_WAVE}, 2")
    E(f"s_cmp_eq_u32 s10, {lead}")
    E("s_cbranch_scc1 M_lead")
    E(f"s_cmp_lg_u32 s{S_INIT}, 0")
    E("s_cbranch_scc1 M_fill0")
    E("s_waitcnt vmcnt(0)")
    E("s_branch M_init")
    E.label("M_lead")
    if opt.get("leadprio", 3): E(f"s_setprio {opt.get('leadprio', 3)}")
    E.label("M_fill0")
    fill(0)
    stamp(E, opt, 1, 2)
    E(f"s_cmp_lg_u32 s{S_INIT}, 0")
    E("s_cbranch_scc1 M_inited")
    E("s_waitcnt vmcnt(5)")
    E.label("M_init")
    E(f"s_mov_b32 s{S_INIT}, 1")
    E(f"v_lshlrev_b32 v{WA}, 4, v{L}")
    E(f"v_add_u32 v{WA}, {WST}, v{WA}")
    for i in range(8):
        E.ds(f"ds_read_b128 {vr(WB+4*i,4)}, v{WA} offset:{i*1024}", rng(WB + 4 * i, 4))
    for s_ in range(4):
        for f in range(2):
            E.need(rng(wb(s_, f), 4))
            E(mfma(zb(f), X + 4 * s_, wb(s_, f), None if s_ == 0 else zb(f)))
            i = s_ * 2 + f
            E.ds(f"ds_read_b128 {vr(WV+4*i,4)}, v{WA} offset:{(26+i)*1024}", rng(WV + 4 * i, 4))
    for s_ in range(4):
        for f in range(2):
            E.need(rng(wv(s_, f), 4))
            E(mfma(ACC + 16 * f, X + 4 * s_, wv(s_, f), None if s_ == 0 else ACC + 16 * f))
            i = s_ * 2 + f
            E.ds(f"ds_read_b128 {vr(WB+4*i,4)}, v{WA} offset:{(8+i)*1024}", rng(WB + 4 * i, 4))
    for i in range(2):
        E.ds(f"ds_read_b128 {vr(WC+4*i,4)}, v{WA} offset:{(16+i)*1024}", rng(WC + 4 * i, 4))
    E(f"s_mov_b32 s10, {NLOG2E}")
    for i in range(32):
        E(f"v_mul_f32 v{Z0+i}, s10, v{Z0+i}")
    for f in range(2):
        for s_ in range(2):
            for jj in range(4):
                E(f"v_cvt_pk_bf16_f32 v{xa(s_,f)+jj}, v{zb(f)+8*s_+2*jj}, v{zb(f)+8*s_+2*jj+1}")
    E.drain()
    for i in range(8):
        E.ds(f"ds_read_b128 {vr(WV+4*i,4)}, v{WA} offset:{(18+i)*1024}", rng(WV + 4 * i, 4))
    E.drain()
    E(f"s_lshr_b32 s10, s{S_WAVE}, 2")
    E(f"s_cmp_eq_u32 s10, {lead}")
    E("s_cbranch_scc0 M_fill0")
    E.label("M_inited")
    stamp(E, opt, 2, 2)
    if opt.get("b3", 1): E("s_barrier")
    fill(1)
    stamp(E, opt, 3, 2)
    E(f"s_cmp_eq_u32 s{S_NT}, 0")
    E(f"s_cbranch_scc1 M_exit")
    rd_dz(E, 0)
    for w in range(4): rd_ds(E, 0, w)
    rd_list_dma(E, 2)
    for i in range(16): E(f"v_mov_b32 v{H+i}, 0")
    for i in range(8): E(f"v_mov_b32 v{S+i}, 0")
    E.need([DZ] + rng(DS, 4))
    E(f"v_add_u32 v{DZ}, v{DZ}, v{CZ}")
    for w in range(4): E(f"v_add_u32 v{DS+w}, v{DS+w}, v{CS}")
    rd_oh(E, 0); rd_oh(E, 1)
    E.need([EPR])
    E(f"v_and_b32 v{EPR}, {EMASK}, v{EPR}")
    E.need(rng(OH, 4))
    E(mfma(Z0, OH, xa(0, 0), None))
    E.need(rng(OH + 4, 4))
    E(mfma(Z0, OH + 4, xa(1, 0), Z0))
    E("s_waitcnt vmcnt(5)")
    stamp(E, opt, 4, 2)
    rd_e(E, 0)
    for s_ in range(4): rd_x(E, s_, 0)
    E.need(rng(EE, 4))
    E(mfma(Z0, EE, wc(0), Z0))
    for s_ in range(4):
        E.need(rng(X + 4 * s_, 4))
        E(mfma(Z0, X + 4 * s_, wb(s_, 0), Z0))
    assert not E.pend
    for g in dma_tile(E, 0):
        for i in g: E(i)
    stamp(E, opt, 5)
    if opt.get("prof"):
        E(f"s_mov_b32 s74, s{S_NT}")
        E("s_memtime s[72:73]")
        E("s_waitcnt lgkmcnt(0)")
    E.label("M_loop")
    tile_body(E, 0, opt)
    E(f"s_sub_u32 s{S_NT}, s{S_NT}, 1")
    E(f"s_cmp_eq_u32 s{S_NT}, 0")
    E("s_cbranch_scc1 M_drain")
    tile_body(E, 1, opt)
    E(f"s_sub_u32 s{S_NT}, s{S_NT}, 1")
    E(f"s_cmp_lg_u32 s{S_NT}, 0")
    E("s_cbranch_scc1 M_loop")
    E.label("M_drain")
    for i in range(8): E(f"v_cvt_pk_bf16_f32 v{MSG+i}, v{H+2*i}, v{H+2*i+1}")
    E("s_nop 1")
    E(mfma(ACC + 16, S, MSG, ACC + 16))
    E(mfma(ACC + 16, S + 4, MSG + 4, ACC + 16))
    E.label("M_exit")
    E(f"s_cmp_eq_u32 s{S_SLOW}, 0")
    E("s_cbranch_scc1 M_epi")
    E("s_waitcnt vmcnt(0) lgkmcnt(0)")
    E(f"s_add_u32 s{S_J}, s{S_J}, 1")
    E(f"s_cmp_ge_u32 s{S_J}, s{S_MAX}")
    E("s_cbranch_scc1 M_epi")
    E.label("M_batch")
    E("s_nop 7")
    E("s_nop 7")
    E("s_barrier")
    reset_cnt(0)
    E(f"v_and_b32 v{ST}, 0xfffff, v{VT}")
    E(f"v_lshrrev_b32 v{CN}, 20, v{VT}")
    E(f"v_add_u32 v{ST}, s{S_J}, v{ST}")
    E(f"v_lshlrev_b32 v{RA}, {3 if direct else 2}, v{ST}")
    E(f"s_mov_b32 s11, {REC_OFF}")
    if direct:
        E(f"buffer_load_dwordx2 {vr(H,2)}, v{RA}, s[{S_WS}:{S_WS+3}], s11 offen")
    else:
        E(f"buffer_load_dword v{H}, v{RA}, s[{S_WS}:{S_WS+3}], s11 offen")
    E(f"v_mov_b32 v{E8}, 8")
    E(f"v_cmp_lt_u32 vcc, s{S_J}, v{CN}")
    E("s_waitcnt vmcnt(0) lgkmcnt(0)")
    E("s_barrier")
    E("s_mov_b64 exec, vcc")
    E(f"v_lshrrev_b32 v{Z0}, 29, v{H+1}")
    E(f"v_lshlrev_b32 v{Z0}, 3, v{Z0}")
    E(f"ds_add_rtn_u32 v{Z1}, v{Z0}, v{E8} offset:{CNT}")
    E("s_waitcnt lgkmcnt(0)")
    E(f"ds_write_b64 v{Z1}, {vr(H,2)}")
    E("s_mov_b64 exec, -1")
    E("s_waitcnt lgkmcnt(0)")
    E("s_barrier")
    E("s_branch M_entry")
    E.label("M_slowinit")
    E(f"s_mov_b32 s{S_SLOW}, 1")
    E(f"s_mov_b32 s{S_J}, 0")
    E(f"v_lshrrev_b32 v{CN}, 20, v{VT}")
    E(f"v_mov_b32 v{Z0}, 0")
    E(f"ds_max_u32 v{Z0}, v{CN} offset:{MAXC}")
    E("s_waitcnt lgkmcnt(0)")
    E("s_barrier")
    E(f"ds_read_b32 v{Z0+1}, v{Z0} offset:{MAXC}")
    E("s_waitcnt lgkmcnt(0)")
    E(f"v_readfirstlane_b32 s{S_MAX}, v{Z0+1}")
    E("s_branch M_batch")
    E.label("M_epi")
    stamp(E, opt, 6)
    if opt.get("prof"):
        E("s_memtime s[92:93]")
        E("s_waitcnt lgkmcnt(0)")
        E("s_sub_u32 s92, s92, s72")
        E("s_lshl_b32 s92, s92, 8")
        E("s_or_b32 s74, s74, s92")
    E(f"s_mov_b32 s10, {NLOG2E}")
    E(f"v_and_b32 v{TMP}, 31, v{TID}")
    E(f"v_lshlrev_b32 v{TMP}, 2, v{TMP}")
    E(f"v_and_b32 v{TMP+1}, 32, v{TID}")
    E(f"v_lshl_add_u32 v{TMP}, v{TMP+1}, 4, v{TMP}")
    E(f"s_lshl_b32 s11, s{S_NODE}, 7")
    E("s_nop 7")
    regs = [ACC + r for r in range(13)] + [ACC + 16 + r for r in range(13)]
    tmp = {a: Z0 + (a - ACC) for a in regs}
    for a in regs: E(f"v_mul_f32 v{tmp[a]}, s10, v{a}")
    for a in regs: E(f"v_exp_f32 v{tmp[a]}, v{tmp[a]}")
    for a in regs: E(f"v_add_f32 v{tmp[a]}, 1.0, v{tmp[a]}")
    for a in regs: E(f"v_rcp_f32 v{tmp[a]}, v{tmp[a]}")
    for a in regs: E(f"v_mul_f32 v{a}, v{a}, v{tmp[a]}")
    for r in range(13):
        E(f"v_cvt_pk_bf16_f32 v{H+r}, v{ACC+r}, v{ACC+16+r}")
        if r < 12:
            E(f"buffer_store_dword v{H+r}, v{TMP}, s[{S_OUT}:{S_OUT+3}], s11 offen offset:{((r&3)+8*(r>>2))*128} {opt.get('out_flags','')}")
    E(f"s_cmp_lt_u32 s{S_WAVE}, 4")
    E("s_cbranch_scc0 M_end2")
    E("s_mov_b32 exec_hi, 0")
    E(f"buffer_store_dword v{H+12}, v{TMP}, s[{S_OUT}:{S_OUT+3}], s11 offen offset:{24*128} {opt.get('out_flags','')}")
    E.label("M_end2")
    prof_out(E, opt, 8, S_WAVE, 0x100000, 8, 74)
    E.label("M_end")
    E("s_endpgm")

def desc(name, vgpr, sgpr=102):
    acc = (vgpr + 3) // 4 * 4
    return [".p2align 6", f".amdhsa_kernel {name}", f"  .amdhsa_next_free_vgpr {vgpr}",
            f"  .amdhsa_next_free_sgpr {sgpr}", f"  .amdhsa_accum_offset {acc}",
            "  .amdhsa_group_segment_fixed_size 0", "  .amdhsa_kernarg_size 80",
            "  .amdhsa_user_sgpr_count 2", "  .amdhsa_user_sgpr_kernarg_segment_ptr 1",
            "  .amdhsa_system_sgpr_workgroup_id_x 1", ".end_amdhsa_kernel"]

def generate(opt):
    global EFLAGS, EMASK
    EMASK = opt.get("emask", 0x1fffff)
    EFLAGS = opt.get("e_flags", "")
    ref = open(f"cdna_kernels/{NAME}.s.ref").read().split("\n")
    hdr = [l for l in ref if l.startswith(";") and "@launch" not in l and "Override" not in l and "Harness parses" not in l]
    out = hdr[:]
    out.append(f"; @launch kernel=part_kernel grid=({NCH},1,1) block=(512,1,1) lds={K1_LDS}")
    out.append(f"; @launch kernel={NAME}_kernel grid=(256,1,1) block=(512,1,1) lds={K2_LDS}")
    out.append('.amdgcn_target "amdgcn-amd-amdhsa--gfx950"')
    out.append(".text")
    for nm, fn in (("part_kernel", gen_k1), (NAME + "_kernel", gen_k2)):
        out += [f".globl {nm}", ".p2align 8", f".type {nm},@function"]
        E = Em(); fn(E, opt); out += E.L
    out.append('.section .rodata,"a"')
    out += desc("part_kernel", 64)
    out += desc(NAME + "_kernel", K2_VGPR)
    return "\n".join(out) + "\n"

if __name__ == "__main__":
    opt = {}
    path = f"cdna_kernels/{NAME}.s"
    for a in sys.argv[1:]:
        k, v = a.split("=", 1)
        if k == "out": path = v
        else:
            try: v = eval(v)
            except Exception: pass
            opt[k] = v
    open(path, "w").write(generate(opt))
    print("wrote", path)
```

```python
import sys, re

NAME = "gather_scatter__edge_featured_mpnn_egc__graph"
N_NODES = 50000
N_EDGES = 800000
CH = 3128
SL_OFF = 0x100000
SL_LINE = 0x800000
NLINE = 3
WS_USE = SL_OFF + NLINE * SL_LINE
NLOG2E = 0xBFB8AA3B

class Em:
    def __init__(self):
        self.L = []
        self.pend = []
    def __call__(self, s):
        self.L.append("    " + s)
    def label(self, s):
        self.L.append(s + ":")
    def c(self, s):
        self.L.append("    ; " + s)
    def ds(self, s, dst=()):
        self(s)
        self.pend.append(set(dst))
        assert len(self.pend) <= 15, "too many outstanding LDS ops"
    def need(self, regs):
        regs = set(regs)
        last = -1
        for i, d in enumerate(self.pend):
            if d & regs:
                last = i
        if last >= 0:
            n = len(self.pend) - 1 - last
            self(f"s_waitcnt lgkmcnt({n})")
            self.pend = self.pend[last + 1:]
    def drain(self):
        self("s_waitcnt lgkmcnt(0)")
        self.pend = []

PROF_OFF = 0x4000000
def stamp(E, opt, i, only=None):
    if opt.get("prof") and (only is None or opt.get("prof") == only):
        E(f"s_memrealtime s[{76+2*i}:{77+2*i}]")
        E(f"s_memtime s[94:95]")
        E("s_waitcnt lgkmcnt(0)")
        E(f"s_mov_b32 s{77+2*i}, s94")
        E.pend = []
def prof_out(E, opt, wslo, wavereg, base, n, extra=None):
    if not opt.get("prof"): return
    E("s_waitcnt vmcnt(0)")
    stamp(E, opt, n - 1)
    E("s_mov_b64 exec, 1")
    E(f"s_mov_b32 s96, s{wslo}")
    E(f"s_mov_b32 s97, s{wslo+1}")
    E(f"s_mov_b32 s98, {PROF_OFF + 0x200000}")
    E("s_mov_b32 s99, 0x20000")
    E("s_lshl_b32 s100, s2, 3")
    E(f"s_add_u32 s100, s100, s{wavereg}")
    E("s_lshl_b32 s100, s100, 6")
    E(f"s_add_u32 s100, s100, {PROF_OFF + base}")
    E("v_mov_b32 v1, 0")
    for i in range(n):
        E(f"v_mov_b32 v2, s{76+2*i}")
        E(f"buffer_store_dword v2, v1, s[96:99], s100 offen offset:{4*i}")
        if i < 7:
            E(f"v_mov_b32 v2, s{77+2*i}")
            E(f"buffer_store_dword v2, v1, s[96:99], s100 offen offset:{32+4*i}")
    if extra is not None:
        E(f"v_mov_b32 v2, s{extra}")
        E(f"buffer_store_dword v2, v1, s[96:99], s100 offen offset:60")

def vr(a, n=1):
    return f"v{a}" if n == 1 else f"v[{a}:{a+n-1}]"
def sr(a, n=1):
    return f"s{a}" if n == 1 else f"s[{a}:{a+n-1}]"
def rng(a, n):
    return list(range(a, a + n))

def srd(E, d, lo, hi, nrec, stride=0):
    E(f"s_mov_b32 s{d}, s{lo}")
    if stride:
        E(f"s_or_b32 s{d+1}, s{hi}, {stride << 16}")
    else:
        E(f"s_mov_b32 s{d+1}, s{hi}")
    E(f"s_mov_b32 s{d+2}, {nrec}")
    E(f"s_mov_b32 s{d+3}, 0x20000")

TZ = 0
TS = 2560
CNT = 5120
FLG = 5184
WST = 5376
ER = 40192
XR = 56576
LIST = 122112
STG = ER
SSTR = 400
INV0 = 0xFFFF
LCAP = 640
K2_LDS = 163840
CEN0 = 288

WB = 0
WV = 32
WC = 64
XA = 72
ACC = 88
Z0 = 120
Z1 = 136
H = 152
X = 168
EE = 184
OH = 188
S = 196
MSG = 204
XP = 212
EPR = 220
DZ = 222
CZ = 223
DS = 224
CS = 228
XAD = 229
EAD = 233
LPX = 234
LPE = 235
LPZ = 236
LPS = 237
VT = 238
TID = 239
TMP = 240
K2_VGPR = 248

def wb(s, f): return WB + (s * 2 + f) * 4
def wv(s, f): return WV + (s * 2 + f) * 4
def wc(f): return WC + f * 4
def xa(s, f): return XA + (s * 2 + f) * 4
def zb(f): return Z1 if f else Z0

def mfma(d, a, b, c):
    cs = "0" if c is None else vr(c, 16)
    return f"v_mfma_f32_32x32x16_bf16 {vr(d,16)}, {vr(a,4)}, {vr(b,4)}, {cs}"

S_X = 12
S_EP = 16
S_WS = 20
S_OUT = 24
S_WAVE = 28
S_G = 29
S_NT = 30
S_XR = 31
S_ER = 32
S_SLOW = 33
S_J = 34
S_MAX = 35
S_NODE = 36
S_LB = 37
S_T0 = 38
S_T1 = 39
S_MASK = 40
S_INIT = 75

EFLAGS = ""
EMASK = 0x1fffff
def dma_tile(E, slot, spacer=None):
    out = []
    out.append([f"s_add_u32 m0, s{S_ER}, {slot*1024}", "s_nop 0",
                f"buffer_load_dwordx4 {vr(EPR,2)}, s[{S_EP}:{S_EP+3}], 0 idxen offen {EFLAGS} lds"])
    for i in range(4):
        out.append([f"s_add_u32 m0, s{S_XR}, {slot*4096 + i*1024}", "s_nop 0",
                    f"buffer_load_dwordx4 {vr(XP+2*i,2)}, s[{S_X}:{S_X+3}], 0 idxen offen lds"])
    return out

def rd_list_dma(E, trel):
    E.ds(f"ds_read_b32 v{EPR}, v{LPE} offset:{trel*256}", [EPR])
    for i in range(4):
        E.ds(f"ds_read_u16 v{XP+2*i}, v{LPX} offset:{trel*256 + i*64}", [XP + 2 * i])

def rd_x(E, s, slot):
    E.ds(f"ds_read_b128 {vr(X+4*s,4)}, v{XAD+s} offset:{slot*4096}", rng(X + 4 * s, 4))
def rd_e(E, slot):
    E.ds(f"ds_read_b128 {vr(EE,4)}, v{EAD} offset:{slot*1024}", rng(EE, 4))
def rd_oh(E, s):
    E.ds(f"ds_read_b128 {vr(OH+4*s,4)}, v{DZ} offset:{s*32}", rng(OH + 4 * s, 4))
def rd_s(E, w):
    E.ds(f"ds_read_b64_tr_b16 {vr(S+2*w,2)}, v{DS+w}", rng(S + 2 * w, 2))
def rd_dz(E, trel):
    E.ds(f"ds_read_u16 v{DZ}, v{LPZ} offset:{trel*256}", [DZ])
def rd_ds(E, trel, w):
    E.ds(f"ds_read_u16 v{DS+w}, v{LPS} offset:{trel*256 + w*64}", [DS + w])

SH16 = {}
def tile_body(E, par, opt):
    prio = opt.get("prio", True)
    def P(n):
        if prio: E(f"s_setprio {n}")
    def M(d, a, b, c):
        E.need(rng(a, 4)); E.need(rng(b, 4))
        if opt.get("halfx") and a in (X + 4, X + 12): return
        if opt.get("nox") and a in (X + 4, X + 8, X + 12): return
        if opt.get("nox") and a == X and d != H: return
        if opt.get("shape16"):
            st = SH16.setdefault(d, [0, 0])
            if c is None: st[0] = 0; st[1] = 2
            for q in range(2):
                blk = d + 4 * (2 * st[0] + q)
                bb = b if q == 0 else (b ^ 8 if b < 64 else b ^ 4)
                cs = "0" if st[1] > 0 else vr(blk, 4)
                E(f"v_mfma_f32_16x16x32_bf16 {vr(blk,4)}, {vr(a,4)}, {vr(bb,4)}, {cs}")
            st[0] ^= 1
            if st[1] > 0: st[1] -= 1
            return
        if opt.get("nooh") and a == OH + 4: return
        E(mfma(d, a, b, c))
    for f in (0, 1):
        z = zb(f); zn = zb(f ^ 1); fn = f ^ 1
        ex = [f"v_exp_f32 v{z+i}, v{z+i}" for i in range(16)]
        rc = [f"v_rcp_f32 v{z+i}, v{z+i}" for i in range(16)]
        if opt.get("notrans"):
            ex = [f"v_mov_b32 v{z+i}, v{z+i}" for i in range(16)]; rc = ex
        cv = [f"v_cvt_pk_bf16_f32 v{MSG+i}, v{H+2*i}, v{H+2*i+1}" for i in range(8)]
        E.c(f"---- slot f={f} par={par} T1")
        P(1)
        M(zn, EE, wc(fn), None)
        if f == 0:
            rd_dz(E, par + 1)
        else:
            for w in range(4): rd_ds(E, par + 1, w)
        for i in range(4): E(cv[i])
        E(ex[0])
        M(zn, OH, xa(0, fn), zn)
        for i in range(4, 8): E(cv[i])
        E(ex[1])
        k = 2
        if f == 1: E("s_waitcnt vmcnt(%d)" % {0:5,1:5,2:4,3:1}[opt.get("nodma",0)])
        for s in range(4):
            M(H, X + 4 * s, wv(s, f), None if s == 0 else H)
            if f == 1: rd_x(E, s, par ^ 1)
            for i in range(3): E(ex[k]); k += 1
        M(ACC + 16 * fn, S, MSG, ACC + 16 * fn)
        E(ex[k]); E(ex[k + 1])
        M(ACC + 16 * fn, S + 4, MSG + 4, ACC + 16 * fn)
        if f == 0:
            for w in range(4): rd_s(E, w)
        E.c("P1")
        P(0)
        if opt.get("pk", 0) & 1:
            for i in range(8): E(f"v_pk_add_f32 {vr(z+2*i,2)}, {vr(z+2*i,2)}, 1.0 op_sel_hi:[1,0]")
        else:
            for i in range(16): E(f"v_add_f32 v{z+i}, 1.0, v{z+i}")
        if f == 0:
            E.need([DZ])
            E(f"v_add_u32 v{DZ}, v{DZ}, v{CZ}")
        else:
            E.need([EPR])
            E(f"v_and_b32 v{EPR}, {EMASK}, v{EPR}")
        E.c("T2")
        P(1)
        M(zn, OH + 4, xa(1, fn), zn)
        if f == 0:
            E("s_waitcnt vmcnt(%d)" % {0:9,1:9,2:8,3:1}[opt.get("nodma",0)])
            rd_e(E, par ^ 1); rd_oh(E, 0); rd_oh(E, 1)
            rd_list_dma(E, par + 3)
        k = 0
        for i in range(3): E(rc[k]); k += 1
        for s in range(4):
            M(zn, X + 4 * s, wb(s, fn), zn)
            if s < 3:
                for i in range(3): E(rc[k]); k += 1
        if f == 1:
            assert not E.pend
            g = dma_tile(E, par ^ 1)
            for q in range(5):
                E(g[q][0])
                if k < 16: E(rc[k]); k += 1
                else: E("s_nop 0")
                if not (opt.get("nodma") == 1 or (opt.get("nodma") == 2 and q == 0) or (opt.get("nodma") == 3 and q > 0)): E(g[q][2])
        while k < 16: E(rc[k]); k += 1
        E.c("P2")
        P(0)
        if f == 1:
            for w in range(4): E(f"v_add_u32 v{DS+w}, v{DS+w}, v{CS}")
            if par == 1:
                for r in (LPX, LPE, LPZ, LPS): E(f"v_add_u32 v{r}, 512, v{r}")
        if opt.get("pk", 0) & 2:
            for i in range(8): E(f"v_pk_mul_f32 {vr(H+2*i,2)}, {vr(H+2*i,2)}, {vr(z+2*i,2)}")
        else:
            for i in range(16): E(f"v_mul_f32 v{H+i}, v{H+i}, v{z+i}")
    assert not E.pend


def rec_calc(E, opt, items, s_mul, s_80, s_28, s_29, v_m49, v_m2000, mid=None):
    for d, s, w, q, t in items: E(f"v_mul_u32_u24 v{q}, s{s_mul}, v{d}")
    for d, s, w, q, t in items: E(f"v_lshrrev_b32 v{q}, 22, v{q}")
    for it in items:
        d, s, w, q, t = it
        E(f"v_mad_i32_i24 v{d}, v{q}, v{v_m49}, v{d}")
        E(f"v_lshl_add_u32 v{w}, v{q}, 30, v{w}")
        if mid: mid(it)
    for d, s, w, q, t in items:
        E(f"v_subrev_u32 v{t}, {opt.get('thr', 25000)}, v{s}")
        if opt.get("xmask"): E(f"v_and_b32 v{s}, {opt['xmask']}, v{s}")
        E(f"v_mad_u32_u24 v{s}, v{d}, s{s_80}, v{s}")
        E(f"v_sub_u32 v{d}, 24, v{d}")
        E(f"v_and_or_b32 v{w}, v{t}, s{s_28}, v{w}")
        E(f"v_and_or_b32 v{w}, v{d}, s{s_29}, v{w}")
        E(f"v_and_b32 v{d}, v{d}, v{v_m2000}")
        E(f"v_add_u32 v{s}, v{s}, v{d}")

def gen_k(E, opt):
    st = opt.get("st", "sc1")
    ld = opt.get("ld", "sc1")
    E.label(NAME + "_kernel")
    E("s_cmp_ge_u32 s2, 256")
    E("s_cbranch_scc1 M_end")
    stamp(E, opt, 0, 1); stamp(E, opt, 0, 3)
    E("s_load_dwordx16 s[40:55], s[0:1], 0")
    E("s_load_dwordx4 s[56:59], s[0:1], 64")
    E(f"v_mov_b32 v{TID}, v0")
    E(f"v_lshrrev_b32 v{TMP}, 6, v0")
    E("s_and_b32 s10, s2, 7")
    E("s_lshr_b32 s11, s2, 3")
    E(f"v_readfirstlane_b32 s{S_WAVE}, v{TMP}")
    E("s_lshl_b32 s3, s10, 5")
    E("s_add_u32 s3, s3, s11")
    E(f"s_and_b32 s{S_J}, s11, 0x18")
    E(f"s_add_u32 s{S_J}, s{S_J}, s10")
    E(f"s_lshl_b32 s{S_J}, s{S_J}, 3")
    E("s_and_b32 s11, s11, 7")
    E(f"s_add_u32 s{S_J}, s{S_J}, s11")
    E(f"s_mul_i32 s72, s{S_J}, {CH*4}")
    E(f"s_add_u32 s73, s72, {CH*4}")
    E(f"s_min_u32 s73, s73, {N_EDGES*4}")
    E("s_add_u32 s74, s72, 8192")
    E("s_add_u32 s75, s72, 12288")
    L = TMP + 1
    T16, T8, T4 = 130, 131, 132
    E(f"v_lshlrev_b32 v{T16}, 4, v0")
    E(f"v_lshlrev_b32 v{T8}, 3, v0")
    E(f"v_lshlrev_b32 v{T4}, 2, v0")
    E(f"v_and_b32 v{L}, 63, v0")
    m, h, h16 = TMP + 2, TMP + 3, TMP + 5
    t6, t7 = TMP + 6, TMP + 7
    E(f"v_and_b32 v{m}, 31, v0")
    E(f"v_lshrrev_b32 v{h}, 5, v{L}")
    E(f"v_lshlrev_b32 v{h16}, 4, v{h}")
    E(f"s_and_b32 s10, s{S_WAVE}, 3")
    E(f"s_lshr_b32 s11, s{S_WAVE}, 2")
    E(f"s_lshl_b32 s{S_G}, s10, 1")
    E(f"s_add_u32 s{S_G}, s{S_G}, s11")
    E(f"s_lshl_b32 s{S_T0}, s3, 2")
    E(f"s_add_u32 s{S_T0}, s10, s{S_T0}")
    E(f"s_mul_i32 s{S_T0}, s{S_T0}, 49")
    E(f"s_mul_i32 s11, s11, 25")
    E(f"s_add_u32 s{S_NODE}, s{S_T0}, s11")
    E(f"s_lshl_b32 s{S_T0}, s{S_WAVE}, 11")
    E(f"s_lshl_b32 s{S_T1}, s10, 11")
    E(f"v_mov_b32 v134, 4")
    E("s_waitcnt lgkmcnt(0)")
    srd(E, 60, 46, 47, "s73")
    srd(E, 64, 44, 45, "s73")
    D1, S1 = 88, 96
    E(f"buffer_load_dwordx4 v[{D1}:{D1+3}], v{T16}, s[60:63], s72 offen")
    E(f"buffer_load_dwordx4 v[{S1}:{S1+3}], v{T16}, s[64:67], s72 offen")
    E(f"buffer_load_dwordx2 v[{D1+4}:{D1+5}], v{T8}, s[60:63], s74 offen")
    E(f"buffer_load_dwordx2 v[{S1+4}:{S1+5}], v{T8}, s[64:67], s74 offen")
    E(f"buffer_load_dword v{D1+6}, v{T4}, s[60:63], s75 offen")
    E(f"buffer_load_dword v{S1+6}, v{T4}, s[64:67], s75 offen")
    srd(E, S_WS, 58, 59, WS_USE)
    E(f"buffer_load_dword v{VT}, v134, s[{S_WS}:{S_WS+3}], 0 offen")
    stamp(E, opt, 1, 3)
    E(f"v_mov_b32 v136, {INV0}")
    E("v_mov_b32 v137, 0")
    E(f"v_mov_b32 v138, {INV0}")
    E("v_mov_b32 v139, 0")
    E(f"v_add_u32 v134, {STG}, v{T16}")
    E(f"v_add_u32 v135, {STG + 7*8192}, v{T16}")
    E(f"ds_write_b32 v{T4}, v137 offset:{TZ}")
    for k in range(13):
        E(f"ds_write_b128 v{134 if k < 7 else 135}, v[136:139] offset:{(k % 7)*8192}")
    srd(E, 4, 52, 53, 18432)
    E(f"s_cmp_lt_u32 s{S_WAVE}, 4")
    E("s_cselect_b32 s68, s50, s48")
    E("s_cselect_b32 s69, s51, s49")
    E("s_mov_b32 s70, 8192")
    E("s_mov_b32 s71, 0x20000")
    srd(E, S_X, 40, 41, N_NODES, 128)
    srd(E, S_EP, 42, 43, N_EDGES, 32)
    srd(E, S_OUT, 54, 55, N_NODES * 128)
    E(f"s_lshl_b32 s{S_XR}, s{S_WAVE}, 13")
    E(f"s_add_u32 s{S_XR}, s{S_XR}, {XR}")
    E(f"s_lshl_b32 s{S_ER}, s{S_WAVE}, 11")
    E(f"s_add_u32 s{S_ER}, s{S_ER}, {ER}")
    E(f"s_mov_b32 s{S_SLOW}, 0")
    PA = TMP + 4
    E(f"v_lshlrev_b32 v{PA}, 4, v{L}")
    E(f"v_and_b32 v{t6}, 7, v{L}")
    E(f"v_lshrrev_b32 v{t7}, 4, v{L}")
    E(f"v_xor_b32 v{t6}, v{t6}, v{t7}")
    E(f"v_lshlrev_b32 v{XP+1}, 4, v{t6}")
    E(f"v_xor_b32 v{XP+3}, 64, v{XP+1}")
    E(f"v_mov_b32 v{XP+5}, v{XP+1}")
    E(f"v_mov_b32 v{XP+7}, v{XP+3}")
    E(f"v_and_b32 v{t6}, 1, v{t6}")
    E(f"v_lshlrev_b32 v{EPR+1}, 4, v{t6}")
    E(f"v_lshrrev_b32 v{t7}, 3, v{L}")
    E(f"v_add_u32 v{XP}, s{S_NODE}, v{t7}")
    for i in range(1, 4): E(f"v_add_u32 v{XP+2*i}, {8*i}, v{XP}")
    W1, Q, RT, TT = 104, 112, 120, 140
    E("s_sub_u32 s73, s73, s72")
    E(f"v_cmp_gt_u32 s[40:41], s73, v{T16}")
    E(f"v_add_u32 v{T8}, 8192, v{T8}")
    E(f"v_add_u32 v134, 12288, v{T4}")
    E(f"v_cmp_gt_u32 s[42:43], s73, v{T8}")
    E(f"v_cmp_gt_u32 s[44:45], s73, v134")
    E("s_mov_b32 s46, 85599")
    E(f"s_mov_b32 s47, {80 << 16}")
    E(f"s_mov_b32 s48, {1 << 28}")
    E(f"s_mov_b32 s49, {1 << 29}")
    E(f"s_mov_b32 s50, 384")
    E(f"s_mov_b32 s51, {STG}")
    E("v_mov_b32 v128, -49")
    E(f"v_mov_b32 v129, {(-(2000 << 16)) & 0xffffffff}")
    E("v_mov_b32 v135, 8")
    E(f"v_mov_b32 v{W1}, v{T4}")
    for j in range(1, 4): E(f"v_add_u32 v{W1+j}, {j}, v{T4}")
    E(f"v_lshrrev_b32 v{W1+4}, 2, v{T8}")
    E(f"v_add_u32 v{W1+5}, 1, v{W1+4}")
    E(f"v_lshrrev_b32 v{W1+6}, 2, v134")
    CA0, CA1, CC0, CG = 148, 149, 150, 147
    E(f"v_lshrrev_b32 v{CC0}, 3, v{TID}")
    E(f"v_and_b32 v{CA0}, 7, v{TID}")
    E(f"v_lshlrev_b32 v{CA0}, 4, v{CA0}")
    E(f"v_lshl_add_u32 v{CG}, v{CC0}, 15, v{CA0}")
    E(f"v_mul_u32_u24 v{CA1}, {SSTR}, v{CC0}")
    E(f"v_lshlrev_b32 v{CC0}, 2, v{CC0}")
    E(f"v_add3_u32 v{CA0}, v{CA0}, v{CA1}, s51")
    E(f"v_add_u32 v{CA1}, {128*SSTR}, v{CA0}")
    E("s_waitcnt lgkmcnt(0)")
    stamp(E, opt, 2, 3)
    E("s_barrier")
    def wdma(srdr, so, lo, lreg=None):
        for k in range(2):
            if lreg is None: E(f"s_mov_b32 m0, {WST + lo + k*1024}")
            else: E(f"s_add_u32 m0, s{lreg}, {WST + lo + k*1024}")
            if k: E(f"s_add_u32 s{so}, s{so}, 1024")
            else: E("s_nop 0")
            E(f"buffer_load_dwordx4 v{PA}, s[{srdr}:{srdr+3}], s{so} offen lds")
    E(f"s_mov_b32 s10, s{S_T0}")
    wdma(4, S_T0, 0, 10)
    wdma(68, S_T1, 18 * 1024, 10)
    def xgrp():
        for i in range(4):
            E(f"buffer_load_dwordx4 {vr(X+4*i,4)}, {vr(XP+2*i,2)}, s[{S_X}:{S_X+3}], 0 idxen offen")
    xg = opt.get("xg", 0)
    if xg == 0: xgrp()
    stamp(E, opt, 3, 3)
    E(f"s_waitcnt vmcnt({8 if xg == 0 else 4})")
    stamp(E, opt, 1, 1); stamp(E, opt, 4, 3)
    def mid(it):
        d, s, w, q, t = it
        E(f"v_and_b32 v{q}, 0x3fc, v{q}")
        E(f"ds_add_rtn_u32 v{RT + q - Q}, v{q}, v135 offset:{TZ}")
        E(f"v_mul_u32_u24 v{q}, {SSTR // 4}, v{q}")
    groups = [(40, range(0, 4)), (42, range(4, 6)), (44, range(6, 7))]
    for gi, (sm, js) in enumerate(groups):
        E(f"s_mov_b64 exec, s[{sm}:{sm+1}]")
        if gi == 2: E("s_cbranch_execz M_nog3a")
        rec_calc(E, opt, [(D1 + j, S1 + j, W1 + j, Q + j, TT + j) for j in js], 46, 47, 48, 49, 128, 129, mid)
    E("s_waitcnt lgkmcnt(0)")
    j = 6
    E(f"v_min_u32 v{RT+j}, s50, v{RT+j}")
    E(f"v_add3_u32 v{Q+j}, v{Q+j}, v{RT+j}, s51")
    E(f"ds_write2_b32 v{Q+j}, v{S1+j}, v{W1+j} offset0:0 offset1:1")
    E.label("M_nog3a")
    E("s_waitcnt lgkmcnt(2)")
    for gi, (sm, js) in enumerate(groups[:2]):
        E(f"s_mov_b64 exec, s[{sm}:{sm+1}]")
        if gi == 1: E("s_waitcnt lgkmcnt(4)")
        for j in js:
            E(f"v_min_u32 v{RT+j}, s50, v{RT+j}")
            E(f"v_add3_u32 v{Q+j}, v{Q+j}, v{RT+j}, s51")
            E(f"ds_write2_b32 v{Q+j}, v{S1+j}, v{W1+j} offset0:0 offset1:1")
    E("s_mov_b64 exec, -1")
    if xg == 1: xgrp()
    E(f"s_cmp_eq_u32 s{S_WAVE}, 7")
    E("s_cbranch_scc0 M_nojc0")
    E(f"s_mov_b32 s{S_T0}, {8*2048}")
    wdma(4, S_T0, 16 * 1024)
    E.label("M_nojc0")
    S_TAG, S_TM = 72, 73
    E(f"v_readfirstlane_b32 s{S_TAG}, v{VT}")
    E(f"s_lshl_b32 s74, s{S_J}, 7")
    E(f"s_add_u32 s74, s74, {SL_OFF}")
    E(f"s_add_u32 s{S_TAG}, s{S_TAG}, 0x1000")
    E(f"s_mov_b32 s{S_TM}, 0x0ffff000")
    E(f"s_and_b32 s{S_TAG}, s{S_TAG}, s{S_TM}")
    E(f"s_mov_b32 s50, 128")
    E(f"s_mov_b32 s51, 256")
    E("s_waitcnt lgkmcnt(0)")
    stamp(E, opt, 5, 3)
    E("s_barrier")
    stamp(E, opt, 2, 1)
    CD = 88
    for k in range(4):
        E(f"ds_read_b128 {vr(CD+4*k,4)}, v{CA0 if k < 2 else CA1} offset:{(k&1)*64*SSTR}")
    for k in range(4):
        E(f"ds_read_b32 v{120+k}, v{CC0} offset:{TZ + k*256}")
    for k in range(4):
        E(f"ds_read_b128 {vr(CD+16+4*k,4)}, v{CA0 if k < 2 else CA1} offset:{(k&1)*64*SSTR + 128}")
    for k in range(4):
        E(f"s_waitcnt lgkmcnt({11-k})")
        E(f"v_or_b32 v{CD+4*k+1}, s{S_TAG}, v{CD+4*k+1}")
        E(f"v_or_b32 v{CD+4*k+3}, s{S_TAG}, v{CD+4*k+3}")
        E(f"s_add_u32 s75, s74, {k*0x200000}")
        E(f"buffer_store_dwordx4 {vr(CD+4*k,4)}, v{CG}, s[{S_WS}:{S_WS+3}], s75 offen {st}")
    E("s_waitcnt lgkmcnt(4)")
    for k in range(4):
        E(f"v_cmp_le_u32 s[{40+2*k}:{41+2*k}], s50, v{120+k}")
    E(f"v_max_u32 v120, v120, v121")
    E(f"v_max3_u32 v124, v120, v122, v123")
    for k in range(4):
        E(f"s_waitcnt lgkmcnt({3-k})")
        E(f"v_or_b32 v{CD+16+4*k+1}, s{S_TAG}, v{CD+16+4*k+1}")
        E(f"v_or_b32 v{CD+16+4*k+3}, s{S_TAG}, v{CD+16+4*k+3}")
        E(f"s_cmp_eq_u64 s[{40+2*k}:{41+2*k}], 0")
        E(f"s_cselect_b64 exec, 0xff, s[{40+2*k}:{41+2*k}]")
        E(f"s_add_u32 s75, s74, {k*0x200000 + SL_LINE}")
        E(f"buffer_store_dwordx4 {vr(CD+16+4*k,4)}, v{CG}, s[{S_WS}:{S_WS+3}], s75 offen {st}")
        E("s_mov_b64 exec, -1")
    E(f"v_cmp_le_u32 vcc, s51, v124")
    E("s_cbranch_vccz M_no3")
    for k in range(4):
        E(f"ds_read_b128 {vr(CD+4*k,4)}, v{CA0 if k < 2 else CA1} offset:{(k&1)*64*SSTR + 256}")
    E("s_waitcnt lgkmcnt(0)")
    for k in range(4):
        E(f"v_or_b32 v{CD+4*k+1}, s{S_TAG}, v{CD+4*k+1}")
        E(f"v_or_b32 v{CD+4*k+3}, s{S_TAG}, v{CD+4*k+3}")
        E(f"s_add_u32 s75, s74, {k*0x200000 + 2*SL_LINE}")
        E(f"buffer_store_dwordx4 {vr(CD+4*k,4)}, v{CG}, s[{S_WS}:{S_WS+3}], s75 offen {st}")
    E.label("M_no3")
    stamp(E, opt, 3, 1)
    srd(E, 4, 56, 57, 256)
    VB = TMP + 6
    E8 = TMP + 3
    WA = TMP + 5
    E(f"s_lshl_b32 s64, s3, 15")
    E(f"s_lshl_b32 s10, s{S_WAVE}, 12")
    E(f"s_add_u32 s64, s64, s10")
    E(f"s_add_u32 s64, s64, {SL_OFF}")
    for u in range(1, 4): E(f"s_add_u32 s{64+u}, s64, {u*1024}")
    def poll_ld(u):
        E(f"buffer_load_dwordx4 {vr(H+4*u,4)}, v{PA}, s[{S_WS}:{S_WS+3}], s{64+u} offen {ld}")
    pp = opt.get("pp", 1)
    E(f"v_lshlrev_b32 v57, 2, v{m}")
    E(f"v_lshl_add_u32 v57, v{h}, 10, v57")
    E(f"s_lshl_b32 s10, s{S_WAVE}, 11")
    E(f"s_add_u32 s10, s10, {WST}")
    E(f"v_add_u32 v58, s10, v57")
    E(f"v_add_u32 v56, s10, v{PA}")
    E("s_waitcnt vmcnt(8)")
    if pp == 0:
        for u in range(4): poll_ld(u)
    for j in range(8): E(f"ds_read_b32 v{j}, v58 offset:{j*128}")
    E(f"v_lshrrev_b32 v{t6}, 1, v{m}")
    E(f"v_and_b32 v{t6}, 7, v{t6}")
    E(f"v_xor_b32 v{t6}, v{t6}, v{h}")
    E(f"v_lshlrev_b32 v{t7}, 7, v{m}")
    E(f"v_add_u32 v{t7}, s{S_XR}, v{t7}")
    for s in range(4):
        E(f"v_xor_b32 v{XAD+s}, {2*s}, v{t6}")
        E(f"v_lshl_add_u32 v{XAD+s}, v{XAD+s}, 4, v{t7}")
    E(f"v_lshrrev_b32 v{t6}, 3, v{m}")
    E(f"v_and_b32 v{t6}, 1, v{t6}")
    E(f"v_xor_b32 v{t6}, v{t6}, v{h}")
    E(f"v_lshlrev_b32 v{t7}, 5, v{m}")
    E(f"v_add_u32 v{t7}, s{S_ER}, v{t7}")
    E(f"v_lshl_add_u32 v{EAD}, v{t6}, 4, v{t7}")
    E(f"v_add_u32 v{CZ}, {TZ}, v{h16}")
    E(f"v_and_b32 v{t6}, 16, v{L}")
    E(f"v_lshlrev_b32 v{t6}, 1, v{t6}")
    E(f"v_and_b32 v{t7}, 3, v{L}")
    E(f"v_lshl_add_u32 v{t6}, v{t7}, 3, v{t6}")
    E(f"v_add_u32 v{CS}, {TS}, v{t6}")
    E(f"v_add_u32 v{WA}, {WST}, v{PA}")
    E(f"s_cmp_lt_u32 s{S_WAVE}, 4")
    E(f"s_cselect_b32 s10, 1.0, {NLOG2E}")
    E("s_waitcnt lgkmcnt(0)")
    for j in range(8): E(f"ds_read_b32 v{8+j}, v58 offset:{18*1024 + j*128}")
    def scaled(R, sc, addr, off):
        for j in range(8):
            E(f"v_lshlrev_b32 v{24+j}, 16, v{R+j}")
            E(f"v_and_b32 v{R+j}, 0xffff0000, v{R+j}")
        for j in range(8):
            E(f"v_mul_f32 v{24+j}, s{sc}, v{24+j}")
            E(f"v_mul_f32 v{R+j}, s{sc}, v{R+j}")
        for j in range(4):
            E(f"v_cvt_pk_bf16_f32 v{32+j}, v{24+2*j}, v{25+2*j}")
            E(f"v_cvt_pk_bf16_f32 v{36+j}, v{R+2*j}, v{R+1+2*j}")
        E(f"ds_write_b128 v{addr}, v[32:35] offset:{off}")
        E(f"ds_write_b128 v{addr}, v[36:39] offset:{off+1024}")
    scaled(0, 10, 56, 0)
    E("s_mov_b32 s10, 0x05040100")
    E("s_mov_b32 s11, 0x07060302")
    E("s_waitcnt lgkmcnt(2)")
    for j in range(4):
        E(f"v_perm_b32 v{40+j}, v{9+2*j}, v{8+2*j}, s10")
        E(f"v_perm_b32 v{44+j}, v{9+2*j}, v{8+2*j}, s11")
    E(f"ds_write_b128 v56, v[40:43] offset:{18*1024}")
    E(f"ds_write_b128 v56, v[44:47] offset:{19*1024}")
    E(f"s_cmp_eq_u32 s{S_WAVE}, 7")
    E("s_cbranch_scc0 M_nojc")
    for j in range(8): E(f"ds_read_b32 v{16+j}, v57 offset:{WST + 16*1024 + j*128}")
    E(f"s_mov_b32 s10, {NLOG2E}")
    E("s_waitcnt lgkmcnt(0)")
    scaled(16, 10, WA, 16 * 1024)
    E.label("M_nojc")
    def reset_cnt(cen, R):
        E(f"v_and_b32 v{R}, 31, v{TID}")
        E(f"v_lshrrev_b32 v{R+1}, 1, v{R}")
        E(f"v_mul_u32_u24 v{R+1}, {LCAP*8}, v{R+1}")
        E(f"v_and_b32 v{R+2}, 1, v{R}")
        E(f"v_add_u32 v{R+1}, {LIST + cen*8}, v{R+1}")
        E(f"v_cmp_eq_u32 vcc, 1, v{R+2}")
        E(f"v_sub_u32 v{R+2}, 7, v{R+1}")
        E("s_nop 0")
        E(f"v_cndmask_b32 v{R+1}, v{R+1}, v{R+2}, vcc")
        E(f"v_cmp_gt_u32 vcc, 16, v{R}")
        E(f"v_lshlrev_b32 v{R}, 2, v{R}")
        E("s_nop 0")
        E(f"v_cndmask_b32 v{R+1}, 0, v{R+1}, vcc")
        E(f"ds_write_b32 v{R}, v{R+1} offset:{CNT}")
    TB = 140
    E(f"s_cmp_eq_u32 s{S_WAVE}, 6")
    E("s_cbranch_scc0 M_nocnt")
    reset_cnt(opt.get('cen', CEN0), TB)
    E.label("M_nocnt")
    E(f"v_add_u32 v60, s{S_XR}, v{PA}")
    for u in range(4):
        E(f"s_mov_b64 s[{40+2*u}:{41+2*u}], -1")
        E(f"s_mov_b32 s{68+u}, {u*8*CH}")
    E(f"s_mov_b32 s{S_T1}, {LIST}")
    E(f"s_mov_b32 s{S_MAX}, 0")
    E("s_waitcnt lgkmcnt(0)")
    E("s_barrier")
    if pp == 1:
        for u in range(4): poll_ld(u)
    for i in range(4):
        E(f"ds_write_b128 v60, {vr(X+4*i,4)} offset:{i*1024}")
    E(f"s_cmp_eq_u32 s{S_WAVE}, 3")
    E("s_cbranch_scc0 M_notab")
    for i in range(4): E(f"v_mov_b32 v{TB+i}, 0")
    for k in range(5):
        E(f"ds_write_b128 v{PA}, {vr(TB,4)} offset:{TZ + k*1024}")
    E(f"v_and_b32 v{TB+4}, 0x13, v{m}")
    E(f"v_and_b32 v{TB+5}, 4, v{m}")
    E(f"v_lshl_add_u32 v{TB+4}, v{TB+5}, 1, v{TB+4}")
    E(f"v_and_b32 v{TB+5}, 8, v{m}")
    E(f"v_lshrrev_b32 v{TB+5}, 1, v{TB+5}")
    E(f"v_add_u32 v{TB+4}, v{TB+4}, v{TB+5}")
    E(f"v_cmp_lt_u32 vcc, 31, v{L}")
    E(f"v_mul_u32_u24 v{TB+6}, 80, v{L}")
    E(f"v_mov_b32 v{TB+7}, 0x3f80")
    E(f"v_cndmask_b32 v{TB+4}, v{TB+4}, v{m}, vcc")
    E(f"v_cmp_eq_u32 vcc, 31, v{m}")
    E(f"v_lshl_add_u32 v{TB+6}, v{TB+4}, 1, v{TB+6}")
    E("s_nop 0")
    E(f"v_cndmask_b32 v{TB+7}, v{TB+7}, v{TB}, vcc")
    E(f"ds_write_b16 v{TB+6}, v{TB+7} offset:{TZ}")
    E.label("M_notab")
    E(f"v_lshrrev_b32 v{VB}, 3, v{L}")
    E(f"s_lshl_b32 s10, s{S_WAVE}, 5")
    E(f"v_add_u32 v{VB}, s10, v{VB}")
    E(f"v_mul_u32_u24 v{VB}, {CH}, v{VB}")
    E(f"v_mov_b32 v{E8}, 8")
    E("s_waitcnt lgkmcnt(0)")
    for s_ in range(4): rd_x(E, s_, 0)
    for i in range(8):
        E.ds(f"ds_read_b128 {vr(WB+4*i,4)}, v{WA} offset:{i*1024}", rng(WB + 4 * i, 4))
    for s_ in range(4):
        for f in range(2):
            E.need(rng(wb(s_, f), 4))
            E(mfma(zb(f), X + 4 * s_, wb(s_, f), None if s_ == 0 else zb(f)))
            i = s_ * 2 + f
            E.ds(f"ds_read_b128 {vr(WV+4*i,4)}, v{WA} offset:{(26+i)*1024}", rng(WV + 4 * i, 4))
    for s_ in range(4):
        for f in range(2):
            E.need(rng(wv(s_, f), 4))
            E(mfma(ACC + 16 * f, X + 4 * s_, wv(s_, f), None if s_ == 0 else ACC + 16 * f))
            i = s_ * 2 + f
            E.ds(f"ds_read_b128 {vr(WB+4*i,4)}, v{WA} offset:{(8+i)*1024}", rng(WB + 4 * i, 4))
    for i in range(2):
        E.ds(f"ds_read_b128 {vr(WC+4*i,4)}, v{WA} offset:{(16+i)*1024}", rng(WC + 4 * i, 4))
    E(f"s_mov_b32 s10, {NLOG2E}")
    for i in range(32):
        E(f"v_mul_f32 v{Z0+i}, s10, v{Z0+i}")
    for f in range(2):
        for s_ in range(2):
            for jj in range(4):
                E(f"v_cvt_pk_bf16_f32 v{xa(s_,f)+jj}, v{zb(f)+8*s_+2*jj}, v{zb(f)+8*s_+2*jj+1}")
    E.drain()
    for i in range(8):
        E.ds(f"ds_read_b128 {vr(WV+4*i,4)}, v{WA} offset:{(18+i)*1024}", rng(WV + 4 * i, 4))
    E.drain()
    if pp == 2:
        for u in range(4): poll_ld(u)
    stamp(E, opt, 4, 1)
    R = EE
    E.label("M_poll")
    E("s_waitcnt vmcnt(0)")
    for u in range(4):
        E(f"s_mov_b64 s[{48+4*u}:{49+4*u}], 0")
        E(f"s_mov_b64 s[{50+4*u}:{51+4*u}], 0")
    for u in range(4):
        a0, a1, b0, b1 = R + 4 * u, R + 4 * u + 1, R + 4 * u + 2, R + 4 * u + 3
        sm = 40 + 2 * u; va = 48 + 4 * u; vb = 50 + 4 * u
        E(f"s_mov_b64 exec, s[{sm}:{sm+1}]")
        E(f"s_cbranch_execz M_pu{u}")
        E(f"v_xor_b32 v{a1}, s{S_TAG}, v{H+4*u+1}")
        E(f"v_xor_b32 v{b1}, s{S_TAG}, v{H+4*u+3}")
        E(f"v_or_b32 v{a0}, v{a1}, v{b1}")
        E(f"v_and_b32 v{a0}, s{S_TM}, v{a0}")
        E(f"v_cmp_ne_u32 vcc, 0, v{a0}")
        E(f"s_cbranch_vccnz M_pl{u}")
        E(f"v_cmp_ne_u16 s[{vb}:{vb+1}], -1, v{H+4*u+2}")
        E(f"v_cmp_ne_u16 s[{va}:{va+1}], -1, v{H+4*u}")
        E(f"v_mov_b32 v{a0}, v{H+4*u}")
        E(f"v_mov_b32 v{b0}, v{H+4*u+2}")
        E(f"v_lshrrev_b32 v{Z0+2*u}, 26, v{a1}")
        E(f"v_lshrrev_b32 v{Z0+2*u+1}, 26, v{b1}")
        E(f"s_lshr_b64 s[{sm}:{sm+1}], s[{vb}:{vb+1}], 7")
        E(f"s_mov_b64 exec, s[{va}:{va+1}]")
        E(f"ds_add_rtn_u32 v{Z1+2*u}, v{Z0+2*u}, v{E8} offset:{CNT}")
        E(f"v_bfe_i32 v{Z0+2*u}, v{a1}, 28, 1")
        E(f"v_add3_u32 v{a1}, v{a1}, v{VB}, s{68+u}")
        E(f"s_mov_b64 exec, s[{vb}:{vb+1}]")
        E(f"ds_add_rtn_u32 v{Z1+2*u+1}, v{Z0+2*u+1}, v{E8} offset:{CNT}")
        E(f"v_bfe_i32 v{Z0+2*u+1}, v{b1}, 28, 1")
        E(f"v_add3_u32 v{b1}, v{b1}, v{VB}, s{68+u}")
        E(f"s_and_b32 s{sm}, s{sm}, 0x01010101")
        E(f"s_and_b32 s{sm+1}, s{sm+1}, 0x01010101")
        E(f"s_mul_i32 s{sm}, s{sm}, 0xff")
        E(f"s_mul_i32 s{sm+1}, s{sm+1}, 0xff")
        E(f"s_add_u32 s{64+u}, s{64+u}, {SL_LINE}")
        E(f"s_mov_b64 exec, s[{sm}:{sm+1}]")
        E(f"s_cbranch_execz M_pu{u}")
        E(f"s_cmp_lt_u32 s{64+u}, {WS_USE}")
        E(f"s_cbranch_scc0 M_giveup")
        E.label(f"M_pl{u}")
        poll_ld(u)
        E.label(f"M_pu{u}")
    E("s_waitcnt lgkmcnt(0)")
    for j in range(8):
        E(f"s_mov_b64 exec, s[{48+2*j}:{49+2*j}]")
        E(f"v_xor_b32 v{Z1+j}, v{Z1+j}, v{Z0+j}")
        E(f"v_max_i32 v{Z1+j}, s{S_T1}, v{Z1+j}")
        E(f"ds_write_b64 v{Z1+j}, {vr(R+2*j,2)}")
    E("s_or_b64 s[10:11], s[40:41], s[42:43]")
    E("s_or_b64 s[48:49], s[44:45], s[46:47]")
    E(f"s_add_u32 s{S_MAX}, s{S_MAX}, 1")
    E("s_or_b64 s[10:11], s[10:11], s[48:49]")
    E("s_cbranch_scc0 M_routed")
    E(f"s_cmp_lt_u32 s{S_MAX}, {opt.get('tmo', 4000)}")
    E("s_cbranch_scc1 M_poll")
    E.label("M_giveup")
    E("s_mov_b64 exec, -1")
    E(f"v_mov_b32 v{Z0}, 0")
    E(f"ds_write_b32 v{Z0}, v{E8} offset:{FLG}")
    E("s_waitcnt vmcnt(0)")
    E.label("M_routed")
    E("s_mov_b64 exec, -1")
    E(f"s_add_u32 s10, s{S_WAVE}, 254")
    E(f"v_mov_b32 v{VT}, s10")
    E(f"s_mov_b32 s{S_T0}, s{S_TAG}")
    E("s_waitcnt lgkmcnt(0)")
    E("s_barrier")
    stamp(E, opt, 5, 1); stamp(E, opt, 0, 2)
    E.label("M_entry")
    E(f"v_and_b32 v{Z0}, 7, v{TID}")
    E(f"v_lshlrev_b32 v{Z0+1}, 3, v{Z0}")
    E(f"ds_read_b64 {vr(Z0+2,2)}, v{Z0+1} offset:{CNT}")
    E(f"ds_read_b32 v{Z0+9}, v{Z0+1} offset:{FLG}")
    E(f"v_and_b32 v{L}, 63, v{TID}")
    E(f"v_and_b32 v{LPX}, 0x38, v{L}")
    E(f"v_lshrrev_b32 v{LPE}, 1, v{L}")
    E(f"v_lshlrev_b32 v{LPE}, 3, v{LPE}")
    E(f"v_and_b32 v{LPZ}, 31, v{L}")
    E(f"v_lshlrev_b32 v{LPZ}, 3, v{LPZ}")
    E(f"v_and_b32 v{LPS}, 12, v{L}")
    E(f"v_lshlrev_b32 v{LPS}, 1, v{LPS}")
    E(f"v_and_b32 v{Z0+4}, 32, v{L}")
    E(f"v_mov_b32 v{Z0+6}, {0xFFFF | ((31*80) << 16)}")
    E(f"v_mov_b32 v{Z0+7}, 0x100000")
    E(f"v_lshlrev_b32 v{Z0+5}, 3, v{L}")
    E(f"v_mov_b32 v{Z0+8}, {LIST - 1024}")
    E(f"s_mov_b32 s11, {K2_LDS - 1024}")
    E("s_waitcnt lgkmcnt(0)")
    E(f"v_sub_u32 v{Z0+3}, 7, v{Z0+3}")
    E(f"v_mov_b32_dpp v{Z0+8}, v{Z0+2} row_shr:1 row_mask:0xf bank_mask:0xf")
    E(f"v_cmp_lt_i32 s[{S_MASK}:{S_MASK+1}], s11, v{Z0+2}")
    E(f"v_readlane_b32 s10, v{Z0+2}, s{S_G}")
    E(f"v_add_u32 v{Z0+8}, 1024, v{Z0+8}")
    E(f"v_readlane_b32 s{S_LB}, v{Z0+3}, s{S_G}")
    E(f"v_cmp_lt_i32 vcc, v{Z0+3}, v{Z0+8}")
    E(f"v_readfirstlane_b32 s{S_MASK+1}, v{Z0+9}")
    E(f"s_or_b32 s11, vcc_lo, s{S_MASK}")
    E(f"s_or_b32 s11, s11, s{S_MASK+1}")
    E(f"s_and_b32 s11, s11, 0xff")
    E("s_cbranch_scc1 M_slowinit")
    E(f"v_add_u32 v{LPX}, s{S_LB}, v{LPX}")
    E(f"v_add3_u32 v{LPE}, v{LPE}, s{S_LB}, 4")
    E(f"s_sub_u32 s{S_NT}, s10, s{S_LB}")
    E(f"v_add_u32 v{Z0+5}, s10, v{Z0+5}")
    E(f"ds_write_b64 v{Z0+5}, {vr(Z0+6,2)}")
    E(f"ds_write_b64 v{Z0+5}, {vr(Z0+6,2)} offset:512")
    E(f"s_add_u32 s10, s{S_LB}, 2")
    E(f"v_add_u32 v{LPZ}, s10, v{LPZ}")
    E(f"v_add3_u32 v{LPS}, v{LPS}, v{Z0+4}, s10")
    E(f"s_add_u32 s{S_NT}, s{S_NT}, 255")
    E(f"s_lshr_b32 s{S_NT}, s{S_NT}, 8")
    E("s_waitcnt lgkmcnt(0)")
    lead = opt.get("lead", 1)
    def fill(t):
        rd_list_dma(E, t)
        E.need([EPR])
        E(f"v_and_b32 v{EPR}, {EMASK}, v{EPR}")
        for g in dma_tile(E, t):
            reg = int(re.search(r"v\[(\d+):", g[2]).group(1))
            E(g[0]); E.need([reg]); E(g[1]); E(g[2])
    if opt.get("leadprio", 3):
        E(f"s_lshr_b32 s10, s{S_WAVE}, 2")
        E(f"s_cmp_eq_u32 s10, {lead}")
        E("s_cbranch_scc0 M_fill0")
        E(f"s_setprio {opt.get('leadprio', 3)}")
        E.label("M_fill0")
    fill(0)
    stamp(E, opt, 1, 2)
    if opt.get("b3", 1): E("s_barrier")
    stamp(E, opt, 2, 2)
    fill(1)
    stamp(E, opt, 3, 2)
    E(f"s_cmp_eq_u32 s{S_NT}, 0")
    E(f"s_cbranch_scc1 M_exit")
    rd_dz(E, 0)
    for w in range(4): rd_ds(E, 0, w)
    rd_list_dma(E, 2)
    for i in range(16): E(f"v_mov_b32 v{H+i}, 0")
    for i in range(8): E(f"v_mov_b32 v{S+i}, 0")
    E.need([DZ] + rng(DS, 4))
    E(f"v_add_u32 v{DZ}, v{DZ}, v{CZ}")
    for w in range(4): E(f"v_add_u32 v{DS+w}, v{DS+w}, v{CS}")
    rd_oh(E, 0); rd_oh(E, 1)
    E.need([EPR])
    E(f"v_and_b32 v{EPR}, {EMASK}, v{EPR}")
    E.need(rng(OH, 4))
    E(mfma(Z0, OH, xa(0, 0), None))
    E.need(rng(OH + 4, 4))
    E(mfma(Z0, OH + 4, xa(1, 0), Z0))
    E("s_waitcnt vmcnt(5)")
    stamp(E, opt, 4, 2)
    rd_e(E, 0)
    for s_ in range(4): rd_x(E, s_, 0)
    E.need(rng(EE, 4))
    E(mfma(Z0, EE, wc(0), Z0))
    for s_ in range(4):
        E.need(rng(X + 4 * s_, 4))
        E(mfma(Z0, X + 4 * s_, wb(s_, 0), Z0))
    assert not E.pend
    for g in dma_tile(E, 0):
        for i in g: E(i)
    stamp(E, opt, 5, 2)
    if opt.get("prof"):
        E(f"s_mov_b32 s74, s{S_NT}")
        if opt.get("prof") == 1: E(f"s_mov_b32 s74, s{S_MAX}")
        E("s_memtime s[72:73]")
        E("s_waitcnt lgkmcnt(0)")
    E.label("M_loop")
    tile_body(E, 0, opt)
    E(f"s_sub_u32 s{S_NT}, s{S_NT}, 1")
    E(f"s_cmp_eq_u32 s{S_NT}, 0")
    E("s_cbranch_scc1 M_drain")
    tile_body(E, 1, opt)
    E(f"s_sub_u32 s{S_NT}, s{S_NT}, 1")
    E(f"s_cmp_lg_u32 s{S_NT}, 0")
    E("s_cbranch_scc1 M_loop")
    E.label("M_drain")
    for i in range(8): E(f"v_cvt_pk_bf16_f32 v{MSG+i}, v{H+2*i}, v{H+2*i+1}")
    E("s_nop 1")
    E(mfma(ACC + 16, S, MSG, ACC + 16))
    E(mfma(ACC + 16, S + 4, MSG + 4, ACC + 16))
    E.label("M_exit")
    E(f"s_cmp_eq_u32 s{S_SLOW}, 0")
    E("s_cbranch_scc1 M_epi")
    E("s_waitcnt vmcnt(0) lgkmcnt(0)")
    E(f"s_add_u32 s{S_J}, s{S_J}, 512")
    E(f"s_cmp_ge_u32 s{S_J}, {N_EDGES}")
    E("s_cbranch_scc1 M_epi")
    E.label("M_batch")
    E("s_setprio 0")
    E("s_load_dwordx4 s[44:47], s[0:1], 16")
    E("s_nop 7")
    E("s_nop 7")
    E("s_barrier")
    reset_cnt(0, Z0 + 8)
    E(f"v_add_u32 v{H+1}, s{S_J}, v{TID}")
    E(f"v_lshlrev_b32 v{H+4}, 2, v{H+1}")
    E("s_waitcnt lgkmcnt(0)")
    srd(E, 60, 46, 47, N_EDGES * 4)
    srd(E, 64, 44, 45, N_EDGES * 4)
    E(f"buffer_load_dword v{H+2}, v{H+4}, s[60:63], 0 offen")
    E(f"buffer_load_dword v{H}, v{H+4}, s[64:67], 0 offen")
    E("s_mov_b32 s46, 85599")
    E(f"s_mov_b32 s47, {80 << 16}")
    E(f"s_mov_b32 s48, 0")
    E(f"s_mov_b32 s49, {1 << 29}")
    E(f"s_mov_b32 s50, {N_EDGES}")
    E(f"v_mov_b32 v{H+6}, -49")
    E(f"v_mov_b32 v{H+7}, {(-(2000 << 16)) & 0xffffffff}")
    E(f"v_mov_b32 v{E8}, 8")
    E(f"v_cmp_gt_u32 s[40:41], s50, v{H+1}")
    E("s_waitcnt vmcnt(0)")
    rec_calc(E, opt, [(H + 2, H, H + 1, H + 3, H + 5)], 46, 47, 48, 49, H + 6, H + 7)
    E(f"v_lshrrev_b32 v{H+3}, 2, v{H+3}")
    E(f"v_cmp_eq_u32 vcc, s3, v{H+3}")
    E("s_barrier")
    E("s_and_b64 exec, vcc, s[40:41]")
    E(f"v_lshrrev_b32 v{Z0}, 26, v{H+1}")
    E(f"ds_add_rtn_u32 v{Z1}, v{Z0}, v{E8} offset:{CNT}")
    E("s_waitcnt lgkmcnt(0)")
    E(f"ds_write_b64 v{Z1}, {vr(H,2)}")
    E("s_mov_b64 exec, -1")
    E("s_waitcnt lgkmcnt(0)")
    E("s_barrier")
    E("s_branch M_entry")
    E.label("M_slowinit")
    E(f"s_mov_b32 s{S_SLOW}, 1")
    E(f"s_mov_b32 s{S_J}, 0")
    E(f"v_mov_b32 v{VT}, 1")
    E(f"v_mov_b32 v{Z0}, 0")
    E(f"s_cmp_eq_u32 s{S_WAVE}, 1")
    E("s_cbranch_scc0 M_batch")
    E("s_mov_b64 exec, 1")
    E(f"buffer_atomic_add v{VT}, v{Z0}, s[4:7], 0 offen sc0 sc1")
    E("s_mov_b64 exec, -1")
    E("s_branch M_batch")
    E.label("M_epi")
    stamp(E, opt, 6)
    if opt.get("prof"):
        E("s_memtime s[92:93]")
        E("s_waitcnt lgkmcnt(0)")
        E("s_sub_u32 s92, s92, s72")
        E("s_lshl_b32 s92, s92, 8")
        E("s_or_b32 s74, s74, s92")
    E(f"s_mov_b32 s10, {NLOG2E}")
    E(f"v_and_b32 v{TMP}, 31, v{TID}")
    E(f"v_lshlrev_b32 v{TMP}, 2, v{TMP}")
    E(f"v_and_b32 v{TMP+1}, 32, v{TID}")
    E(f"v_lshl_add_u32 v{TMP}, v{TMP+1}, 4, v{TMP}")
    E(f"v_readfirstlane_b32 s11, v{VT}")
    E(f"v_mov_b32 v{TMP+2}, 4")
    E(f"v_mov_b32 v{TMP+3}, s{S_T0}")
    E("s_cmp_eq_u32 s11, 255")
    E("s_cbranch_scc0 M_noep")
    E(f"buffer_store_dword v{TMP+3}, v{TMP+2}, s[{S_WS}:{S_WS+3}], 0 offen")
    E.label("M_noep")
    E(f"s_lshl_b32 s11, s{S_NODE}, 7")
    E("s_nop 7")
    regs = [ACC + r for r in range(13)] + [ACC + 16 + r for r in range(13)]
    tmp = {a: Z0 + (a - ACC) for a in regs}
    for a in regs: E(f"v_mul_f32 v{tmp[a]}, s10, v{a}")
    for a in regs: E(f"v_exp_f32 v{tmp[a]}, v{tmp[a]}")
    for a in regs: E(f"v_add_f32 v{tmp[a]}, 1.0, v{tmp[a]}")
    for a in regs: E(f"v_rcp_f32 v{tmp[a]}, v{tmp[a]}")
    for a in regs: E(f"v_mul_f32 v{a}, v{a}, v{tmp[a]}")
    of = opt.get("out_flags", "sc1")
    for r in range(13):
        E(f"v_cvt_pk_bf16_f32 v{H+r}, v{ACC+r}, v{ACC+16+r}")
        if r < 12:
            E(f"buffer_store_dword v{H+r}, v{TMP}, s[{S_OUT}:{S_OUT+3}], s11 offen offset:{((r&3)+8*(r>>2))*128} {of}")
    E(f"s_cmp_lt_u32 s{S_WAVE}, 4")
    E("s_cbranch_scc0 M_end2")
    E("s_mov_b32 exec_hi, 0")
    E(f"buffer_store_dword v{H+12}, v{TMP}, s[{S_OUT}:{S_OUT+3}], s11 offen offset:{24*128} {of}")
    E.label("M_end2")
    prof_out(E, opt, S_WS, S_WAVE, 0x100000, 8, 74)
    E.label("M_end")
    E("s_endpgm")

def desc(name, vgpr, sgpr=102):
    acc = (vgpr + 3) // 4 * 4
    return [".p2align 6", f".amdhsa_kernel {name}", f"  .amdhsa_next_free_vgpr {vgpr}",
            f"  .amdhsa_next_free_sgpr {sgpr}", f"  .amdhsa_accum_offset {acc}",
            "  .amdhsa_group_segment_fixed_size 0", "  .amdhsa_kernarg_size 80",
            "  .amdhsa_user_sgpr_count 2", "  .amdhsa_user_sgpr_kernarg_segment_ptr 1",
            "  .amdhsa_system_sgpr_workgroup_id_x 1", ".end_amdhsa_kernel"]

def generate(opt):
    global EFLAGS, EMASK
    EMASK = opt.get("emask", 0x1fffff)
    EFLAGS = opt.get("e_flags", "")
    ref = open(f"cdna_kernels/{NAME}.s.ref").read().split("\n")
    hdr = [l for l in ref if l.startswith(";") and "@launch" not in l and "Override" not in l and "Harness parses" not in l]
    out = hdr[:]
    if opt.get("aslist"):
        out.append(f"; @launch kernel={NAME}_kernel grid=(256,1,1) block=(512,1,1) lds={K2_LDS}")
    else:
        out.append(f"; @launch grid=(256,1,1) block=(512,1,1) lds={K2_LDS}")
    out.append('.amdgcn_target "amdgcn-amd-amdhsa--gfx950"')
    out.append(".text")
    nm = NAME + "_kernel"
    out += [f".globl {nm}", ".p2align 8", f".type {nm},@function"]
    E = Em(); gen_k(E, opt); out += E.L
    out.append('.section .rodata,"a"')
    out += desc(nm, K2_VGPR)
    return "\n".join(out) + "\n"

if __name__ == "__main__":
    opt = {}
    path = f"cdna_kernels/{NAME}.s"
    for a in sys.argv[1:]:
        k, v = a.split("=", 1)
        if k == "out": path = v
        else:
            try: v = eval(v)
            except Exception: pass
            opt[k] = v
    open(path, "w").write(generate(opt))
    print("wrote", path)
```

```python
import sys, re

NAME = "gather_scatter__edge_featured_mpnn_egc__graph"
N_NODES = 50000
N_EDGES = 800000
CH = 3128
SL_OFF = 0x100000
SL_LINE = 0x800000
NLINE = 2
WS_USE = SL_OFF + NLINE * SL_LINE
NLOG2E = 0xBFB8AA3B

class Em:
    def __init__(self):
        self.L = []
        self.pend = []
    def __call__(self, s):
        self.L.append("    " + s)
    def label(self, s):
        self.L.append(s + ":")
    def c(self, s):
        self.L.append("    ; " + s)
    def ds(self, s, dst=()):
        self(s)
        self.pend.append(set(dst))
        assert len(self.pend) <= 15, "too many outstanding LDS ops"
    def need(self, regs):
        regs = set(regs)
        last = -1
        for i, d in enumerate(self.pend):
            if d & regs:
                last = i
        if last >= 0:
            n = len(self.pend) - 1 - last
            self(f"s_waitcnt lgkmcnt({n})")
            self.pend = self.pend[last + 1:]
    def drain(self):
        self("s_waitcnt lgkmcnt(0)")
        self.pend = []

PROF_OFF = 0x4000000
def stamp(E, opt, i, only=None):
    if opt.get("prof") and (only is None or opt.get("prof") == only):
        E(f"s_memrealtime s[{76+2*i}:{77+2*i}]")
        E(f"s_memtime s[94:95]")
        E("s_waitcnt lgkmcnt(0)")
        E(f"s_mov_b32 s{77+2*i}, s94")
        E.pend = []
def prof_out(E, opt, wslo, wavereg, base, n, extra=None):
    if not opt.get("prof"): return
    E("s_waitcnt vmcnt(0)")
    stamp(E, opt, n - 1)
    E("s_mov_b64 exec, 1")
    if opt.get("leak") is not None:
        i, j, lb, lm = opt["leak"]
        E(f"s_cmp_eq_u32 s{wavereg}, 4")
        E("s_cbranch_scc0 M_end")
        if i >= 100:
            E(f"s_sub_u32 s96, s{77+2*(i-100)}, s{77+2*j}")
            E("s_lshr_b32 s96, s96, 4")
        else:
            E(f"s_sub_u32 s96, s{76+2*i}, s{76+2*j}")
        E("s_min_u32 s96, s96, 10000")
        E(f"s_mul_i32 s96, s96, {lm}")
        E(f"s_add_u32 s96, s96, {lb}")
        E.label("M_leak")
        E("s_sleep 2")
        E("s_memrealtime s[98:99]")
        E("s_waitcnt lgkmcnt(0)")
        E("s_sub_u32 s98, s98, s76")
        E("s_cmp_lt_u32 s98, s96")
        E("s_cbranch_scc1 M_leak")
        return
    if opt.get("dbgout"):
        E(f"s_cmp_eq_u32 s{wavereg}, 4")
        E("s_cbranch_scc0 M_end")
        E("v_mov_b32 v1, 0")
        for q, i in enumerate((5, 6, 7)):
            E(f"v_mov_b32 v2, s{76+2*i}")
            E(f"buffer_atomic_umax v2, v1, s[4:7], 0 offen offset:{4+4*q} sc1")
        for q, i in enumerate((0,)):
            E(f"s_not_b32 s96, s{76+2*i}")
            E(f"v_mov_b32 v2, s96")
            E(f"buffer_atomic_umax v2, v1, s[4:7], 0 offen offset:{16+4*q} sc1")
        E("s_cmp_eq_u32 s2, 77")
        E("s_cbranch_scc0 M_end")
        for q, r in enumerate((76, 78, 80, 82, 84, 86, 88, 90, 87, 89, extra)):
            E(f"v_mov_b32 v2, s{r}")
            E(f"buffer_store_dword v2, v1, s[4:7], 0 offen offset:{20+4*q} sc1")
        return
    E(f"s_mov_b32 s96, s{wslo}")
    E(f"s_mov_b32 s97, s{wslo+1}")
    E(f"s_mov_b32 s98, {PROF_OFF + 0x200000}")
    E("s_mov_b32 s99, 0x20000")
    E("s_lshl_b32 s100, s2, 3")
    E(f"s_add_u32 s100, s100, s{wavereg}")
    E("s_lshl_b32 s100, s100, 6")
    E(f"s_add_u32 s100, s100, {PROF_OFF + base}")
    E("v_mov_b32 v1, 0")
    for i in range(n):
        E(f"v_mov_b32 v2, s{76+2*i}")
        E(f"buffer_store_dword v2, v1, s[96:99], s100 offen offset:{4*i}")
        if i < 7:
            E(f"v_mov_b32 v2, s{77+2*i}")
            E(f"buffer_store_dword v2, v1, s[96:99], s100 offen offset:{32+4*i}")
    if extra is not None:
        E(f"v_mov_b32 v2, s{extra}")
        E(f"buffer_store_dword v2, v1, s[96:99], s100 offen offset:60")

def vr(a, n=1):
    return f"v{a}" if n == 1 else f"v[{a}:{a+n-1}]"
def sr(a, n=1):
    return f"s{a}" if n == 1 else f"s[{a}:{a+n-1}]"
def rng(a, n):
    return list(range(a, a + n))

def srd(E, d, lo, hi, nrec, stride=0):
    E(f"s_mov_b32 s{d}, s{lo}")
    if stride:
        E(f"s_or_b32 s{d+1}, s{hi}, {stride << 16}")
    else:
        E(f"s_mov_b32 s{d+1}, s{hi}")
    E(f"s_mov_b32 s{d+2}, {nrec}")
    E(f"s_mov_b32 s{d+3}, 0x20000")

TZ = 0
TS = 2560
CNT = 5120
FLG = 5184
WST = 5376
ER = 40192
XR = 56576
LIST = 122112
STG = ER
SSTR = 400
INV0 = 0xFFFF
LCAP = 640
K2_LDS = 163840
CEN0 = 288

WB = 0
WV = 32
WC = 64
XA = 72
ACC = 88
Z0 = 120
Z1 = 136
H = 152
X = 168
EE = 184
OH = 188
S = 196
MSG = 204
XP = 212
EPR = 220
DZ = 222
CZ = 223
DS = 224
CS = 228
XAD = 229
EAD = 233
LPX = 234
LPE = 235
LPZ = 236
LPS = 237
VT = 238
TID = 239
TMP = 240
K2_VGPR = 248

def wb(s, f): return WB + (s * 2 + f) * 4
def wv(s, f): return WV + (s * 2 + f) * 4
def wc(f): return WC + f * 4
def xa(s, f): return XA + (s * 2 + f) * 4
def zb(f): return Z1 if f else Z0

def mfma(d, a, b, c):
    cs = "0" if c is None else vr(c, 16)
    return f"v_mfma_f32_32x32x16_bf16 {vr(d,16)}, {vr(a,4)}, {vr(b,4)}, {cs}"

S_X = 12
S_EP = 16
S_WS = 20
S_OUT = 24
S_WAVE = 28
S_G = 29
S_NT = 30
S_XR = 31
S_ER = 32
S_SLOW = 33
S_J = 34
S_MAX = 35
S_NODE = 36
S_LB = 37
S_T0 = 38
S_T1 = 39
S_MASK = 40
S_80 = 75
KINC = 87382
TMASK = 0xFFE0E0E0

EFLAGS = ""
EMASK = 0x1fffff
def dma_tile(E, slot, spacer=None):
    out = []
    out.append([f"s_add_u32 m0, s{S_ER}, {slot*1024}", "s_nop 0",
                f"buffer_load_dwordx4 {vr(EPR,2)}, s[{S_EP}:{S_EP+3}], 0 idxen offen {EFLAGS} lds"])
    for i in range(4):
        out.append([f"s_add_u32 m0, s{S_XR}, {slot*4096 + i*1024}", "s_nop 0",
                    f"buffer_load_dwordx4 {vr(XP+2*i,2)}, s[{S_X}:{S_X+3}], 0 idxen offen lds"])
    return out

def rd_list_dma(E, trel):
    E.ds(f"ds_read_b32 v{EPR}, v{LPE} offset:{trel*256}", [EPR])
    for i in range(4):
        E.ds(f"ds_read_u16 v{XP+2*i}, v{LPX} offset:{trel*256 + i*64}", [XP + 2 * i])

def rd_x(E, s, slot):
    E.ds(f"ds_read_b128 {vr(X+4*s,4)}, v{XAD+s} offset:{slot*4096}", rng(X + 4 * s, 4))
def rd_e(E, slot):
    E.ds(f"ds_read_b128 {vr(EE,4)}, v{EAD} offset:{slot*1024}", rng(EE, 4))
def rd_oh(E, s):
    E.ds(f"ds_read_b128 {vr(OH+4*s,4)}, v{DZ} offset:{s*32}", rng(OH + 4 * s, 4))
def rd_s(E, w):
    E.ds(f"ds_read_b64_tr_b16 {vr(S+2*w,2)}, v{DS+w}", rng(S + 2 * w, 2))
def rd_dz(E, trel):
    E.ds(f"ds_read_u16 v{DZ}, v{LPZ} offset:{trel*256}", [DZ])
def rd_ds(E, trel, w):
    E.ds(f"ds_read_u16 v{DS+w}, v{LPS} offset:{trel*256 + w*64}", [DS + w])

SH16 = {}
def tile_body(E, par, opt):
    prio = opt.get("prio", True)
    def P(n):
        if prio: E(f"s_setprio {n}")
    def M(d, a, b, c):
        E.need(rng(a, 4)); E.need(rng(b, 4))
        if opt.get("halfx") and a in (X + 4, X + 12): return
        if opt.get("nox") and a in (X + 4, X + 8, X + 12): return
        if opt.get("nox") and a == X and d != H: return
        if opt.get("shape16"):
            st = SH16.setdefault(d, [0, 0])
            if c is None: st[0] = 0; st[1] = 2
            for q in range(2):
                blk = d + 4 * (2 * st[0] + q)
                bb = b if q == 0 else (b ^ 8 if b < 64 else b ^ 4)
                cs = "0" if st[1] > 0 else vr(blk, 4)
                E(f"v_mfma_f32_16x16x32_bf16 {vr(blk,4)}, {vr(a,4)}, {vr(bb,4)}, {cs}")
            st[0] ^= 1
            if st[1] > 0: st[1] -= 1
            return
        if opt.get("nooh") and a == OH + 4: return
        E(mfma(d, a, b, c))
    for f in (0, 1):
        z = zb(f); zn = zb(f ^ 1); fn = f ^ 1
        ex = [f"v_exp_f32 v{z+i}, v{z+i}" for i in range(16)]
        rc = [f"v_rcp_f32 v{z+i}, v{z+i}" for i in range(16)]
        if opt.get("notrans"):
            ex = [f"v_mov_b32 v{z+i}, v{z+i}" for i in range(16)]; rc = ex
        cv = [f"v_cvt_pk_bf16_f32 v{MSG+i}, v{H+2*i}, v{H+2*i+1}" for i in range(8)]
        E.c(f"---- slot f={f} par={par} T1")
        P(1)
        M(zn, EE, wc(fn), None)
        if f == 0:
            rd_dz(E, par + 1)
        else:
            for w in range(4): rd_ds(E, par + 1, w)
        for i in range(4): E(cv[i])
        E(ex[0])
        M(zn, OH, xa(0, fn), zn)
        for i in range(4, 8): E(cv[i])
        E(ex[1])
        k = 2
        if f == 1: E("s_waitcnt vmcnt(%d)" % {0:5,1:5,2:4,3:1}[opt.get("nodma",0)])
        for s in range(4):
            M(H, X + 4 * s, wv(s, f), None if s == 0 else H)
            if f == 1: rd_x(E, s, par ^ 1)
            for i in range(3): E(ex[k]); k += 1
        M(ACC + 16 * fn, S, MSG, ACC + 16 * fn)
        E(ex[k]); E(ex[k + 1])
        M(ACC + 16 * fn, S + 4, MSG + 4, ACC + 16 * fn)
        if f == 0:
            for w in range(4): rd_s(E, w)
        E.c("P1")
        P(0)
        if opt.get("pk", 0) & 1:
            for i in range(8): E(f"v_pk_add_f32 {vr(z+2*i,2)}, {vr(z+2*i,2)}, 1.0 op_sel_hi:[1,0]")
        else:
            for i in range(16): E(f"v_add_f32 v{z+i}, 1.0, v{z+i}")
        if f == 0:
            E.need([DZ])
            E(f"v_mad_u32_u24 v{DZ}, v{DZ}, s{S_80}, v{CZ}")
        else:
            E.need([EPR])
            E(f"v_and_b32 v{EPR}, {EMASK}, v{EPR}")
        E.c("T2")
        P(1)
        M(zn, OH + 4, xa(1, fn), zn)
        if f == 0:
            E("s_waitcnt vmcnt(%d)" % {0:9,1:9,2:8,3:1}[opt.get("nodma",0)])
            rd_e(E, par ^ 1); rd_oh(E, 0); rd_oh(E, 1)
            rd_list_dma(E, par + 3)
        k = 0
        for i in range(3): E(rc[k]); k += 1
        for s in range(4):
            M(zn, X + 4 * s, wb(s, fn), zn)
            if s < 3:
                for i in range(3): E(rc[k]); k += 1
        if f == 1:
            assert not E.pend
            g = dma_tile(E, par ^ 1)
            for q in range(5):
                E(g[q][0])
                if k < 16: E(rc[k]); k += 1
                else: E("s_nop 0")
                if not (opt.get("nodma") == 1 or (opt.get("nodma") == 2 and q == 0) or (opt.get("nodma") == 3 and q > 0)): E(g[q][2])
        while k < 16: E(rc[k]); k += 1
        E.c("P2")
        P(0)
        if f == 1:
            for w in range(4): E(f"v_mad_u32_u24 v{DS+w}, v{DS+w}, s{S_80}, v{CS}")
            if par == 1:
                for r in (LPX, LPE, LPZ, LPS): E(f"v_add_u32 v{r}, 512, v{r}")
        if opt.get("pk", 0) & 2:
            for i in range(8): E(f"v_pk_mul_f32 {vr(H+2*i,2)}, {vr(H+2*i,2)}, {vr(z+2*i,2)}")
        else:
            for i in range(16): E(f"v_mul_f32 v{H+i}, v{H+i}, v{z+i}")
    assert not E.pend


def rec_calc(E, opt, items, s_mul, s_28, s_29, v_m49, mid=None, merge=True):
    for d, s, w, q, t in items: E(f"v_mul_u32_u24 v{q}, s{s_mul}, v{d}")
    for d, s, w, q, t in items: E(f"v_lshrrev_b32 v{q}, 22, v{q}")
    for it in items:
        d, s, w, q, t = it
        E(f"v_mad_i32_i24 v{d}, v{q}, v{v_m49}, v{d}")
        E(f"v_lshl_add_u32 v{w}, v{q}, 30, v{w}")
        if mid: mid(it)
    for d, s, w, q, t in items:
        E(f"v_subrev_u32 v{t}, 25, v{d}")
        E(f"v_and_or_b32 v{w}, v{t}, s{s_29}, v{w}")
        E(f"v_min_u32 v{d}, v{d}, v{t}")
        E(f"v_subrev_u32 v{t}, {opt.get('thr', 25000)}, v{s}")
        if opt.get("xmask"): E(f"v_and_b32 v{s}, {opt['xmask']}, v{s}")
        E(f"v_and_b32 v{t}, s{s_28}, v{t}")
        if merge: E(f"v_or3_b32 v{w}, v{w}, v{t}, v{s}")

def gen_k(E, opt):
    st = opt.get("st", "sc1")
    ld = opt.get("ld", "sc1")
    E.label(NAME + "_kernel")
    E("s_cmp_ge_u32 s2, 256")
    E("s_cbranch_scc1 M_end")
    stamp(E, opt, 0, 1); stamp(E, opt, 0, 3); stamp(E, opt, 0, 4)
    E("s_load_dwordx16 s[40:55], s[0:1], 0")
    E("s_load_dwordx4 s[56:59], s[0:1], 64")
    E(f"v_mov_b32 v{TID}, v0")
    E(f"v_lshrrev_b32 v{TMP}, 6, v0")
    E("s_and_b32 s10, s2, 7")
    E("s_lshr_b32 s11, s2, 3")
    E(f"v_readfirstlane_b32 s{S_WAVE}, v{TMP}")
    E("s_lshl_b32 s3, s10, 5")
    E("s_add_u32 s3, s3, s11")
    E(f"s_and_b32 s{S_J}, s11, 0x18")
    E(f"s_add_u32 s{S_J}, s{S_J}, s10")
    E(f"s_lshl_b32 s{S_J}, s{S_J}, 3")
    E("s_and_b32 s11, s11, 7")
    E(f"s_add_u32 s{S_J}, s{S_J}, s11")
    E(f"s_mul_i32 s72, s{S_J}, {CH*4}")
    E(f"s_add_u32 s73, s72, {CH*4}")
    E(f"s_min_u32 s73, s73, {N_EDGES*4}")
    E("s_add_u32 s74, s72, 8192")
    E("s_add_u32 s75, s72, 12288")
    L = TMP + 1
    T16, T8, T4 = 130, 131, 132
    E(f"v_lshlrev_b32 v{T16}, 4, v0")
    E(f"v_lshlrev_b32 v{T8}, 3, v0")
    E(f"v_lshlrev_b32 v{T4}, 2, v0")
    E(f"v_and_b32 v{L}, 63, v0")
    m, h, h16 = TMP + 2, TMP + 3, TMP + 5
    t6, t7 = TMP + 6, TMP + 7
    E(f"v_and_b32 v{m}, 31, v0")
    E(f"v_lshrrev_b32 v{h}, 5, v{L}")
    E(f"v_lshlrev_b32 v{h16}, 4, v{h}")
    E(f"s_and_b32 s10, s{S_WAVE}, 3")
    E(f"s_lshr_b32 s11, s{S_WAVE}, 2")
    E(f"s_lshl_b32 s{S_G}, s10, 1")
    E(f"s_add_u32 s{S_G}, s{S_G}, s11")
    E(f"s_xor_b32 s{S_G}, s{S_G}, 1")
    E(f"s_lshl_b32 s{S_T0}, s3, 2")
    E(f"s_add_u32 s{S_T0}, s10, s{S_T0}")
    E(f"s_mul_i32 s{S_T0}, s{S_T0}, 49")
    E(f"s_mul_i32 s11, s11, 25")
    E(f"s_add_u32 s{S_NODE}, s{S_T0}, s11")
    E(f"s_lshl_b32 s{S_T0}, s{S_WAVE}, 11")
    E(f"s_lshl_b32 s{S_T1}, s10, 11")
    if opt.get("tlbw", 0) == 2:
        E(f"v_lshlrev_b32 v134, 19, v{m}")
        E(f"v_add_u32 v134, 4, v134")
    else:
        E(f"v_mov_b32 v134, 4")
    E("s_waitcnt lgkmcnt(0)")
    srd(E, 60, 46, 47, "s73")
    srd(E, 64, 44, 45, "s73")
    D1, S1 = 88, 96
    E(f"buffer_load_dwordx4 v[{D1}:{D1+3}], v{T16}, s[60:63], s72 offen")
    E(f"buffer_load_dwordx4 v[{S1}:{S1+3}], v{T16}, s[64:67], s72 offen")
    E(f"buffer_load_dwordx2 v[{D1+4}:{D1+5}], v{T8}, s[60:63], s74 offen")
    E(f"buffer_load_dwordx2 v[{S1+4}:{S1+5}], v{T8}, s[64:67], s74 offen")
    E(f"buffer_load_dword v{D1+6}, v{T4}, s[60:63], s75 offen")
    E(f"buffer_load_dword v{S1+6}, v{T4}, s[64:67], s75 offen")
    srd(E, S_WS, 58, 59, WS_USE)
    E(f"buffer_load_dword v{VT}, v134, s[{S_WS}:{S_WS+3}], 0 offen")
    stamp(E, opt, 1, 3)
    E(f"v_mov_b32 v136, {INV0}")
    E(f"v_mov_b32 v137, {INV0}")
    E(f"v_mov_b32 v138, {INV0}")
    E("v_mov_b32 v139, 0")
    E(f"v_lshrrev_b32 v134, 4, v0")
    E(f"v_mul_u32_u24 v134, {SSTR - 256}, v134")
    E(f"v_add_u32 v134, v134, v{T16}")
    E(f"v_add_u32 v135, {STG + 64*SSTR}, v134")
    E(f"ds_write_b32 v{T4}, v139 offset:{TZ}")
    for k in range(8):
        E(f"ds_write_b128 v{134 if k < 2 else 135}, v[136:139] offset:{STG + k*32*SSTR if k < 2 else (k-2)*32*SSTR}")
    srd(E, 4, 52, 53, 18432)
    E(f"s_cmp_lt_u32 s{S_WAVE}, 4")
    E("s_cselect_b32 s68, s50, s48")
    E("s_cselect_b32 s69, s51, s49")
    E("s_mov_b32 s70, 8192")
    E("s_mov_b32 s71, 0x20000")
    srd(E, S_X, 40, 41, N_NODES, 128)
    srd(E, S_EP, 42, 43, N_EDGES, 32)
    srd(E, S_OUT, 54, 55, N_NODES * 128)
    E(f"s_lshl_b32 s{S_XR}, s{S_WAVE}, 13")
    E(f"s_add_u32 s{S_XR}, s{S_XR}, {XR}")
    E(f"s_lshl_b32 s{S_ER}, s{S_WAVE}, 11")
    E(f"s_add_u32 s{S_ER}, s{S_ER}, {ER}")
    E(f"s_mov_b32 s{S_SLOW}, 0")
    PA = TMP + 4
    E(f"v_lshlrev_b32 v{PA}, 4, v{L}")
    E(f"v_and_b32 v{t6}, 7, v{L}")
    E(f"v_lshrrev_b32 v{t7}, 4, v{L}")
    E(f"v_xor_b32 v{t6}, v{t6}, v{t7}")
    E(f"v_lshlrev_b32 v{XP+1}, 4, v{t6}")
    E(f"v_xor_b32 v{XP+3}, 64, v{XP+1}")
    E(f"v_mov_b32 v{XP+5}, v{XP+1}")
    E(f"v_mov_b32 v{XP+7}, v{XP+3}")
    E(f"v_and_b32 v{t6}, 1, v{t6}")
    E(f"v_lshlrev_b32 v{EPR+1}, 4, v{t6}")
    E(f"v_lshrrev_b32 v{t7}, 3, v{L}")
    E(f"v_add_u32 v{XP}, s{S_NODE}, v{t7}")
    for i in range(1, 4): E(f"v_add_u32 v{XP+2*i}, {8*i}, v{XP}")
    for i in range(4): E(f"v_mov_b32 v{X+12+i}, 0")
    W1, Q, RT, TT = 104, 112, 120, 140
    E("s_sub_u32 s73, s73, s72")
    E(f"v_cmp_gt_u32 s[40:41], s73, v{T16}")
    E(f"v_add_u32 v{T8}, 8192, v{T8}")
    E(f"v_add_u32 v134, 12288, v{T4}")
    E(f"v_cmp_gt_u32 s[42:43], s73, v{T8}")
    E(f"v_cmp_gt_u32 s[44:45], s73, v134")
    E("s_mov_b32 s46, 85599")
    E(f"s_mov_b32 s48, {1 << 28}")
    E(f"s_mov_b32 s49, {1 << 29}")
    E(f"s_mov_b32 s50, {64 << 16}")
    E(f"s_mov_b32 s51, {STG}")
    E("v_mov_b32 v128, -49")
    E(f"v_mov_b32 v135, {KINC}")
    E(f"v_lshlrev_b32 v{W1}, 16, v{T4}")
    for j in range(1, 4): E(f"v_add_u32 v{W1+j}, {j << 16}, v{W1}")
    E(f"v_lshlrev_b32 v{W1+4}, 14, v{T8}")
    E(f"v_add_u32 v{W1+5}, {1 << 16}, v{W1+4}")
    E(f"v_lshlrev_b32 v{W1+6}, 14, v134")
    CA0, CA1, CC0, CG = 148, 149, 150, 147
    E(f"v_lshrrev_b32 v{CC0}, 3, v{TID}")
    E(f"v_and_b32 v{CA0}, 7, v{TID}")
    E(f"v_and_b32 v129, {8 - opt.get('gran', 2)}, v{TID}")
    E(f"v_lshlrev_b32 v129, 18, v129")
    E(f"v_lshlrev_b32 v{CA0}, 4, v{CA0}")
    E(f"v_lshl_add_u32 v{CG}, v{CC0}, 15, v{CA0}")
    E(f"v_mul_u32_u24 v{CA1}, {SSTR}, v{CC0}")
    E(f"v_lshlrev_b32 v{CC0}, 2, v{CC0}")
    E(f"v_add3_u32 v{CA0}, v{CA0}, v{CA1}, s51")
    E(f"v_add_u32 v{CA1}, {128*SSTR}, v{CA0}")
    E("s_waitcnt lgkmcnt(0)")
    stamp(E, opt, 2, 3)
    E("s_barrier")
    def wdma(srdr, so, lo, lreg=None):
        for k in range(2):
            if lreg is None: E(f"s_mov_b32 m0, {WST + lo + k*1024}")
            else: E(f"s_add_u32 m0, s{lreg}, {WST + lo + k*1024}")
            if k: E(f"s_add_u32 s{so}, s{so}, 1024")
            else: E("s_nop 0")
            E(f"buffer_load_dwordx4 v{PA}, s[{srdr}:{srdr+3}], s{so} offen lds")
    def xgrp():
        for i in range(4):
            if i == 3 and opt.get("x25", 1): E("s_mov_b64 exec, 0xff")
            E(f"buffer_load_dwordx4 {vr(X+4*i,4)}, {vr(XP+2*i,2)}, s[{S_X}:{S_X+3}], 0 idxen offen")
        E("s_mov_b64 exec, -1")
    def ncl():
        E(f"s_lshl_b32 s10, s{S_WAVE}, 11")
        wdma(4, S_T0, 0, 10)
        wdma(68, S_T1, 18 * 1024, 10)
        xgrp()
    nc = opt.get("nc", 0)
    tw = opt.get("tlbw", 0)
    if tw == 1:
        E(f"s_lshl_b32 s10, s{S_WAVE}, 21")
        E(f"s_add_u32 s10, s10, {SL_OFF}")
        E(f"v_lshlrev_b32 v133, 19, v{L}")
        E("s_mov_b64 exec, 0xf")
        E(f"buffer_load_dword v133, v133, s[{S_WS}:{S_WS+3}], s10 offen")
        E("s_mov_b64 exec, -1")
    w0 = 1 + (tw == 1)
    if nc == 0:
        ncl()
        stamp(E, opt, 3, 3)
        E(f"s_waitcnt vmcnt({8 + w0})")
    elif nc == 1:
        E(f"s_cmp_lt_u32 s{S_WAVE}, 4")
        E("s_cbranch_scc0 M_nc0")
        ncl()
        E(f"s_waitcnt vmcnt({8 + w0})")
        E("s_branch M_nc1")
        E.label("M_nc0")
        E(f"s_waitcnt vmcnt({w0})")
        E.label("M_nc1")
    else:
        E(f"s_waitcnt vmcnt({w0})")
    stamp(E, opt, 1, 1); stamp(E, opt, 4, 3)
    def mid(it):
        d, s, w, q, t = it
        E(f"v_and_b32 v{q}, 0x3fc, v{q}")
        E(f"ds_add_rtn_u32 v{RT + q - Q}, v{q}, v135 offset:{TZ}")
        E(f"v_mul_u32_u24 v{q}, {SSTR // 4}, v{q}")
    groups = [(40, range(0, 4)), (42, range(4, 6)), (44, range(6, 7))]
    for gi, (sm, js) in enumerate(groups):
        E(f"s_mov_b64 exec, s[{sm}:{sm+1}]")
        if gi == 2: E("s_cbranch_execz M_nog3a")
        rec_calc(E, opt, [(D1 + j, S1 + j, W1 + j, Q + j, TT + j) for j in js], 46, 48, 49, 128, mid)
    def put(j):
        E(f"v_min_u32 v{RT+j}, s50, v{RT+j}")
        E(f"v_mad_u32_u16 v{Q+j}, v{RT+j}, 4, v{Q+j} op_sel:[1,0,0,0]")
        E(f"v_bfe_u32 v{RT+j}, v{RT+j}, 16, 2")
        E(f"ds_write_b32 v{Q+j}, v{W1+j} offset:{STG}")
        E(f"v_mad_i32_i24 v{Q+j}, v{RT+j}, -3, v{Q+j}")
        E(f"ds_write_b8 v{Q+j}, v{D1+j} offset:{STG+12}")
    E("s_waitcnt lgkmcnt(0)")
    put(6)
    E.label("M_nog3a")
    E("s_waitcnt lgkmcnt(2)")
    for gi, (sm, js) in enumerate(groups[:2]):
        E(f"s_mov_b64 exec, s[{sm}:{sm+1}]")
        if gi == 1: E("s_waitcnt lgkmcnt(8)")
        for j in js: put(j)
    E("s_mov_b64 exec, -1")
    def jobc(lab):
        E(f"s_cmp_eq_u32 s{S_WAVE}, 7")
        E(f"s_cbranch_scc0 {lab}")
        E(f"s_mov_b32 s{S_T0}, {8*2048}")
        wdma(4, S_T0, 16 * 1024)
        E.label(lab)
    if nc == 1:
        E(f"s_cmp_lt_u32 s{S_WAVE}, 4")
        E("s_cbranch_scc1 M_nc2")
        ncl()
        E.label("M_nc2")
    if nc == 2: ncl()
    E(f"s_waitcnt vmcnt({(8 if nc < 3 else 0) + w0 - 1})")
    if nc < 3: jobc("M_nojc0")
    S_TAG, S_TM = 72, 73
    E(f"v_readfirstlane_b32 s{S_TAG}, v{VT}")
    E(f"s_lshl_b32 s74, s{S_J}, 7")
    E(f"s_add_u32 s74, s74, {SL_OFF}")
    E(f"s_mov_b32 s{S_TM}, {TMASK}")
    E(f"s_orn2_b32 s{S_TAG}, s{S_TAG}, s{S_TM}")
    E(f"s_add_u32 s{S_TAG}, s{S_TAG}, 1")
    E(f"s_and_b32 s{S_TAG}, s{S_TAG}, s{S_TM}")
    E(f"s_mov_b32 s51, {32 << 16}")
    E("s_waitcnt lgkmcnt(0)")
    stamp(E, opt, 5, 3)
    E("s_barrier")
    stamp(E, opt, 2, 1)
    CD = 88
    for k in range(4):
        E(f"ds_read_b32 v{120+k}, v{CC0} offset:{TZ + k*256}")
        E(f"ds_read_b128 {vr(CD+4*k,4)}, v{CA0 if k < 2 else CA1} offset:{(k&1)*64*SSTR}")
    for k in range(4):
        E(f"s_waitcnt lgkmcnt({6-2*k})")
        E(f"v_cmp_le_u32 vcc, v129, v{120+k}")
        E(f"v_or_b32 v{CD+4*k+3}, s{S_TAG}, v{CD+4*k+3}")
        E(f"s_add_u32 s75, s74, {k*0x200000}")
        E("s_mov_b64 exec, vcc")
        E(f"buffer_store_dwordx4 {vr(CD+4*k,4)}, v{CG}, s[{S_WS}:{S_WS+3}], s75 offen {st}")
        E("s_mov_b64 exec, -1")
    E(f"v_max_u32 v120, v120, v121")
    E(f"v_max3_u32 v124, v120, v122, v123")
    E(f"v_cmp_le_u32 vcc, s51, v124")
    E("s_cbranch_vccz M_no2")
    E("s_mov_b64 exec, vcc")
    for k in range(4):
        E(f"ds_read_b128 {vr(CD+16+4*k,4)}, v{CA0 if k < 2 else CA1} offset:{(k&1)*64*SSTR + 128}")
    E("s_waitcnt lgkmcnt(0)")
    for k in range(4):
        E(f"v_or_b32 v{CD+16+4*k+3}, s{S_TAG}, v{CD+16+4*k+3}")
        E(f"s_add_u32 s75, s74, {k*0x200000 + SL_LINE}")
        E(f"buffer_store_dwordx4 {vr(CD+16+4*k,4)}, v{CG}, s[{S_WS}:{S_WS+3}], s75 offen {st}")
    E("s_mov_b64 exec, -1")
    E.label("M_no2")
    stamp(E, opt, 3, 1)
    if nc == 3:
        ncl(); jobc("M_nojc0")
    pfa, pfc = opt.get("pf", (0, 0))
    def pfx(i0, n):
        for i in range(i0, i0 + n):
            E(f"s_and_b32 s10, s2, 0xf8")
            E(f"s_add_u32 s10, s10, s{S_WAVE}")
            E(f"s_lshl_b32 s10, s10, 6")
            E(f"s_add_u32 s10, s10, {i*16384}")
            E(f"s_min_u32 s10, s10, {opt.get('pfmax', opt.get('thr', 25000)) - 64}")
            E(f"v_add_u32 v{250+i}, s10, v{L}")
            E(f"buffer_load_dword v{250+i}, v{250+i}, s[{S_X}:{S_X+3}], 0 idxen")
    pfx(0, pfa)
    srd(E, 4, 56, 57, 256)
    VB = TMP + 6
    E8 = TMP + 3
    WA = TMP + 5
    E(f"s_lshl_b32 s64, s3, 15")
    E(f"s_lshl_b32 s10, s{S_WAVE}, 12")
    E(f"s_add_u32 s64, s64, s10")
    E(f"s_add_u32 s64, s64, {SL_OFF}")
    for u in range(1, 4): E(f"s_add_u32 s{64+u}, s64, {u*1024}")
    def poll_ld(u):
        E(f"buffer_load_dwordx4 {vr(H+4*u,4)}, v{PA}, s[{S_WS}:{S_WS+3}], s{64+u} offen {ld}")
    pp = opt.get("pp", 1)
    E(f"v_lshlrev_b32 v57, 2, v{m}")
    E(f"v_lshl_add_u32 v57, v{h}, 10, v57")
    E(f"s_lshl_b32 s10, s{S_WAVE}, 11")
    E(f"s_add_u32 s10, s10, {WST}")
    E(f"v_add_u32 v58, s10, v57")
    E(f"v_add_u32 v56, s10, v{PA}")
    E(f"s_waitcnt vmcnt({(4 if nc < 3 else 0) + pfa})")
    stamp(E, opt, 1, 4)
    if pp == 0:
        for u in range(4): poll_ld(u)
    for j in range(8): E(f"ds_read_b32 v{j}, v58 offset:{j*128}")
    E(f"v_lshrrev_b32 v{t6}, 1, v{m}")
    E(f"v_and_b32 v{t6}, 7, v{t6}")
    E(f"v_xor_b32 v{t6}, v{t6}, v{h}")
    E(f"v_lshlrev_b32 v{t7}, 7, v{m}")
    E(f"v_add_u32 v{t7}, s{S_XR}, v{t7}")
    for s in range(4):
        E(f"v_xor_b32 v{XAD+s}, {2*s}, v{t6}")
        E(f"v_lshl_add_u32 v{XAD+s}, v{XAD+s}, 4, v{t7}")
    E(f"v_lshrrev_b32 v{t6}, 3, v{m}")
    E(f"v_and_b32 v{t6}, 1, v{t6}")
    E(f"v_xor_b32 v{t6}, v{t6}, v{h}")
    E(f"v_lshlrev_b32 v{t7}, 5, v{m}")
    E(f"v_add_u32 v{t7}, s{S_ER}, v{t7}")
    E(f"v_lshl_add_u32 v{EAD}, v{t6}, 4, v{t7}")
    E(f"v_add_u32 v{CZ}, {TZ}, v{h16}")
    E(f"v_and_b32 v{t6}, 16, v{L}")
    E(f"v_lshlrev_b32 v{t6}, 1, v{t6}")
    E(f"v_and_b32 v{t7}, 3, v{L}")
    E(f"v_lshl_add_u32 v{t6}, v{t7}, 3, v{t6}")
    E(f"v_add_u32 v{CS}, {TS}, v{t6}")
    E(f"v_add_u32 v{WA}, {WST}, v{PA}")
    E(f"s_cmp_lt_u32 s{S_WAVE}, 4")
    E(f"s_cselect_b32 s10, 1.0, {NLOG2E}")
    E("s_waitcnt lgkmcnt(0)")
    for j in range(8): E(f"ds_read_b32 v{8+j}, v58 offset:{18*1024 + j*128}")
    def scaled(R, sc, addr, off):
        for j in range(8):
            E(f"v_lshlrev_b32 v{24+j}, 16, v{R+j}")
            E(f"v_and_b32 v{R+j}, 0xffff0000, v{R+j}")
        for j in range(8):
            E(f"v_mul_f32 v{24+j}, s{sc}, v{24+j}")
            E(f"v_mul_f32 v{R+j}, s{sc}, v{R+j}")
        for j in range(4):
            E(f"v_cvt_pk_bf16_f32 v{32+j}, v{24+2*j}, v{25+2*j}")
            E(f"v_cvt_pk_bf16_f32 v{36+j}, v{R+2*j}, v{R+1+2*j}")
        E(f"ds_write_b128 v{addr}, v[32:35] offset:{off}")
        E(f"ds_write_b128 v{addr}, v[36:39] offset:{off+1024}")
    scaled(0, 10, 56, 0)
    E("s_mov_b32 s10, 0x05040100")
    E("s_mov_b32 s11, 0x07060302")
    E("s_waitcnt lgkmcnt(2)")
    for j in range(4):
        E(f"v_perm_b32 v{40+j}, v{9+2*j}, v{8+2*j}, s10")
        E(f"v_perm_b32 v{44+j}, v{9+2*j}, v{8+2*j}, s11")
    E(f"ds_write_b128 v56, v[40:43] offset:{18*1024}")
    E(f"ds_write_b128 v56, v[44:47] offset:{19*1024}")
    E(f"s_cmp_eq_u32 s{S_WAVE}, 7")
    E("s_cbranch_scc0 M_nojc")
    for j in range(8): E(f"ds_read_b32 v{16+j}, v57 offset:{WST + 16*1024 + j*128}")
    E(f"s_mov_b32 s10, {NLOG2E}")
    E("s_waitcnt lgkmcnt(0)")
    scaled(16, 10, WA, 16 * 1024)
    E.label("M_nojc")
    def reset_cnt(cen, R):
        E(f"v_and_b32 v{R}, 31, v{TID}")
        E(f"v_lshrrev_b32 v{R+1}, 1, v{R}")
        E(f"v_mul_u32_u24 v{R+1}, {LCAP*8}, v{R+1}")
        E(f"v_and_b32 v{R+2}, 1, v{R}")
        E(f"v_add_u32 v{R+1}, {LIST + cen*8}, v{R+1}")
        E(f"v_cmp_eq_u32 vcc, 1, v{R+2}")
        E(f"v_sub_u32 v{R+2}, 7, v{R+1}")
        E("s_nop 0")
        E(f"v_cndmask_b32 v{R+1}, v{R+1}, v{R+2}, vcc")
        E(f"v_cmp_gt_u32 vcc, 16, v{R}")
        E(f"v_lshlrev_b32 v{R}, 2, v{R}")
        E("s_nop 0")
        E(f"v_cndmask_b32 v{R+1}, 0, v{R+1}, vcc")
        E(f"ds_write_b32 v{R}, v{R+1} offset:{CNT}")
    TB = 140
    E(f"s_cmp_eq_u32 s{S_WAVE}, 6")
    E("s_cbranch_scc0 M_nocnt")
    reset_cnt(opt.get('cen', CEN0), TB)
    E.label("M_nocnt")
    E(f"v_add_u32 v60, s{S_XR}, v{PA}")
    for u in range(4):
        E(f"s_mov_b64 s[{40+2*u}:{41+2*u}], -1")
    E(f"s_mov_b32 s{S_T1}, {LIST}")
    E(f"s_mov_b32 s{S_MAX}, 0")
    E("s_waitcnt lgkmcnt(0)")
    E("s_barrier")
    stamp(E, opt, 2, 4)
    if pp == 1:
        for u in range(4): poll_ld(u)
        pfx(pfa, pfc)
    for i in range(4):
        E(f"ds_write_b128 v60, {vr(X+4*i,4)} offset:{i*1024}")
    E(f"s_cmp_eq_u32 s{S_WAVE}, 3")
    E("s_cbranch_scc0 M_notab")
    for i in range(4): E(f"v_mov_b32 v{TB+i}, 0")
    for k in range(5):
        E(f"ds_write_b128 v{PA}, {vr(TB,4)} offset:{TZ + k*1024}")
    E(f"v_and_b32 v{TB+4}, 0x13, v{m}")
    E(f"v_and_b32 v{TB+5}, 4, v{m}")
    E(f"v_lshl_add_u32 v{TB+4}, v{TB+5}, 1, v{TB+4}")
    E(f"v_and_b32 v{TB+5}, 8, v{m}")
    E(f"v_lshrrev_b32 v{TB+5}, 1, v{TB+5}")
    E(f"v_add_u32 v{TB+4}, v{TB+4}, v{TB+5}")
    E(f"v_cmp_lt_u32 vcc, 31, v{L}")
    E(f"v_mul_u32_u24 v{TB+6}, 80, v{L}")
    E(f"v_mov_b32 v{TB+7}, 0x3f80")
    E(f"v_cndmask_b32 v{TB+4}, v{TB+4}, v{m}, vcc")
    E(f"v_cmp_eq_u32 vcc, 31, v{m}")
    E(f"v_lshl_add_u32 v{TB+6}, v{TB+4}, 1, v{TB+6}")
    E("s_nop 0")
    E(f"v_cndmask_b32 v{TB+7}, v{TB+7}, v{TB}, vcc")
    E(f"ds_write_b16 v{TB+6}, v{TB+7} offset:{TZ}")
    E.label("M_notab")
    E(f"v_lshrrev_b32 v{VB}, 3, v{L}")
    E(f"s_lshl_b32 s10, s{S_WAVE}, 5")
    E(f"v_add_u32 v{VB}, s10, v{VB}")
    E(f"v_mul_u32_u24 v{VB}, {CH}, v{VB}")
    E(f"v_mov_b32 v{E8}, 8")
    E("s_waitcnt lgkmcnt(0)")
    for s_ in range(4): rd_x(E, s_, 0)
    for i in range(8):
        E.ds(f"ds_read_b128 {vr(WB+4*i,4)}, v{WA} offset:{i*1024}", rng(WB + 4 * i, 4))
    for s_ in range(4):
        for f in range(2):
            E.need(rng(wb(s_, f), 4))
            E(mfma(zb(f), X + 4 * s_, wb(s_, f), None if s_ == 0 else zb(f)))
            i = s_ * 2 + f
            E.ds(f"ds_read_b128 {vr(WV+4*i,4)}, v{WA} offset:{(26+i)*1024}", rng(WV + 4 * i, 4))
    for s_ in range(4):
        for f in range(2):
            E.need(rng(wv(s_, f), 4))
            E(mfma(ACC + 16 * f, X + 4 * s_, wv(s_, f), None if s_ == 0 else ACC + 16 * f))
            i = s_ * 2 + f
            E.ds(f"ds_read_b128 {vr(WB+4*i,4)}, v{WA} offset:{(8+i)*1024}", rng(WB + 4 * i, 4))
    for i in range(2):
        E.ds(f"ds_read_b128 {vr(WC+4*i,4)}, v{WA} offset:{(16+i)*1024}", rng(WC + 4 * i, 4))
    E(f"s_mov_b32 s10, {NLOG2E}")
    for i in range(32):
        E(f"v_mul_f32 v{Z0+i}, s10, v{Z0+i}")
    for f in range(2):
        for s_ in range(2):
            for jj in range(4):
                E(f"v_cvt_pk_bf16_f32 v{xa(s_,f)+jj}, v{zb(f)+8*s_+2*jj}, v{zb(f)+8*s_+2*jj+1}")
    E.drain()
    for i in range(8):
        E.ds(f"ds_read_b128 {vr(WV+4*i,4)}, v{WA} offset:{(18+i)*1024}", rng(WV + 4 * i, 4))
    E.drain()
    if pp == 2:
        for u in range(4): poll_ld(u)
    stamp(E, opt, 4, 1); stamp(E, opt, 3, 4)
    R = EE
    MK = [48, 50, 52, 54, 56, 58, 60, 62, 68, 70, 8, 74]
    VBU, SEL, DX = X, X + 4, X + 8
    for u in range(4): E(f"v_add_u32 v{VBU+u}, {u*8*CH}, v{VB}")
    for j in range(3): E(f"v_mov_b32 v{SEL+j}, {0x0c040100 + (j << 16)}")
    if pfc:
        E(f"s_waitcnt vmcnt({pfc})")
        E("s_branch M_poll1")
    E.label("M_poll")
    E("s_waitcnt vmcnt(0)")
    E.label("M_poll1")
    stamp(E, opt, 4, 4)
    for k in MK: E(f"s_mov_b64 s[{k}:{k+1}], 0")
    for u in range(4):
        sm = 40 + 2 * u; mk = MK[3*u:3*u+3]; A = H + 4 * u
        E(f"s_mov_b64 exec, s[{sm}:{sm+1}]")
        E(f"s_cbranch_execz M_pu{u}")
        E(f"v_xor_b32 v{DX}, s{S_TAG}, v{A+3}")
        E(f"v_cmp_ne_u16 s[{mk[2]}:{mk[2]+1}], -1, v{A+2}")
        E(f"v_and_b32 v{DX+1}, s{S_TM}, v{DX}")
        E(f"v_cmp_eq_u32 vcc, 0, v{DX+1}")
        for j in range(3): E(f"v_lshrrev_b32 v{Z1+3*u+j}, 26, v{A+j}")
        E(f"s_and_b64 s[{mk[2]}:{mk[2]+1}], s[{mk[2]}:{mk[2]+1}], vcc")
        E(f"s_lshl_b64 s[10:11], s[{mk[2]}:{mk[2]+1}], 1")
        E(f"s_or_b32 s10, s10, 0x01010101")
        E(f"s_or_b32 s11, s11, 0x01010101")
        E(f"s_and_b64 s[10:11], s[10:11], exec")
        E(f"s_andn2_b64 s[10:11], s[10:11], vcc")
        E(f"s_cselect_b64 s[{mk[2]}:{mk[2]+1}], 0, s[{mk[2]}:{mk[2]+1}]")
        E(f"s_cbranch_scc1 M_pl{u}")
        E(f"s_mov_b64 exec, vcc")
        E(f"v_cmp_ne_u16 s[{mk[0]}:{mk[0]+1}], -1, v{A}")
        E(f"v_cmp_ne_u16 s[{mk[1]}:{mk[1]+1}], -1, v{A+1}")
        for j in range(3): E(f"v_and_b32 v{Z1+3*u+j}, 0x3c, v{Z1+3*u+j}")
        E(f"s_lshr_b64 s[{sm}:{sm+1}], s[{mk[2]}:{mk[2]+1}], 7")
        for j in range(3):
            i = 3 * u + j
            E(f"s_mov_b64 exec, s[{mk[j]}:{mk[j]+1}]")
            E(f"ds_add_rtn_u32 v{Z1+i}, v{Z1+i}, v{E8} offset:{CNT}")
            E(f"v_bfe_u32 v{R+2*i+1}, v{A+j}, 16, 12")
            E(f"v_bfe_i32 v{Z0+i}, v{A+j}, 28, 1")
            E(f"v_perm_b32 v{R+2*i}, v{DX}, v{A+j}, v{SEL+j}")
            E(f"v_add_u32 v{R+2*i+1}, v{R+2*i+1}, v{VBU+u}")
        E(f"s_and_b32 s{sm}, s{sm}, 0x01010101")
        E(f"s_and_b32 s{sm+1}, s{sm+1}, 0x01010101")
        E(f"s_mul_i32 s{sm}, s{sm}, 0xff")
        E(f"s_mul_i32 s{sm+1}, s{sm+1}, 0xff")
        E(f"s_add_u32 s{64+u}, s{64+u}, {SL_LINE}")
        E(f"s_mov_b64 exec, s[{sm}:{sm+1}]")
        E(f"s_cbranch_execz M_pu{u}")
        E(f"s_cmp_lt_u32 s{64+u}, {WS_USE}")
        E(f"s_cbranch_scc0 M_giveup")
        E.label(f"M_pl{u}")
        poll_ld(u)
        E.label(f"M_pu{u}")
    E("s_waitcnt lgkmcnt(0)")
    for j in range(12):
        E(f"s_mov_b64 exec, s[{MK[j]}:{MK[j]+1}]")
        E(f"v_xor_b32 v{Z1+j}, v{Z1+j}, v{Z0+j}")
        E(f"v_max_i32 v{Z1+j}, s{S_T1}, v{Z1+j}")
        E(f"ds_write_b64 v{Z1+j}, {vr(R+2*j,2)}")
    E("s_or_b64 s[10:11], s[40:41], s[42:43]")
    E("s_or_b64 s[48:49], s[44:45], s[46:47]")
    E(f"s_add_u32 s{S_MAX}, s{S_MAX}, 1")
    E("s_or_b64 s[10:11], s[10:11], s[48:49]")
    E("s_cbranch_scc0 M_routed")
    E(f"s_cmp_lt_u32 s{S_MAX}, {opt.get('tmo', 4000)}")
    E("s_cbranch_scc1 M_poll")
    E.label("M_giveup")
    E("s_mov_b64 exec, -1")
    E(f"v_mov_b32 v{Z0}, 0")
    E(f"ds_write_b32 v{Z0}, v{E8} offset:{FLG}")
    E("s_waitcnt vmcnt(0)")
    E.label("M_routed")
    E("s_mov_b64 exec, -1")
    E(f"s_add_u32 s10, s{S_WAVE}, 254")
    E(f"v_mov_b32 v{VT}, s10")
    E(f"s_mov_b32 s{S_T0}, s{S_TAG}")
    E("s_waitcnt lgkmcnt(0)")
    E("s_barrier")
    stamp(E, opt, 5, 1); stamp(E, opt, 0, 2); stamp(E, opt, 5, 4)
    E.label("M_entry")
    E(f"v_and_b32 v{Z0}, 7, v{TID}")
    E(f"v_lshlrev_b32 v{Z0+1}, 3, v{Z0}")
    E(f"ds_read_b64 {vr(Z0+2,2)}, v{Z0+1} offset:{CNT}")
    E(f"ds_read_b32 v{Z0+9}, v{Z0+1} offset:{FLG}")
    E(f"v_and_b32 v{L}, 63, v{TID}")
    E(f"v_and_b32 v{LPX}, 0x38, v{L}")
    E(f"v_lshrrev_b32 v{LPE}, 1, v{L}")
    E(f"v_lshlrev_b32 v{LPE}, 3, v{LPE}")
    E(f"v_and_b32 v{LPZ}, 31, v{L}")
    E(f"v_lshlrev_b32 v{LPZ}, 3, v{LPZ}")
    E(f"v_and_b32 v{LPS}, 12, v{L}")
    E(f"v_lshlrev_b32 v{LPS}, 1, v{LPS}")
    E(f"v_and_b32 v{Z0+4}, 32, v{L}")
    E(f"v_mov_b32 v{Z0+6}, {0xFFFF | (31 << 16)}")
    E(f"s_mov_b32 s{S_80}, 80")
    E(f"v_mov_b32 v{Z0+7}, 0x100000")
    E(f"v_lshlrev_b32 v{Z0+5}, 3, v{L}")
    E(f"v_mov_b32 v{Z0+8}, {LIST - 1024}")
    E(f"s_mov_b32 s11, {K2_LDS - 1024}")
    E("s_waitcnt lgkmcnt(0)")
    E(f"v_sub_u32 v{Z0+3}, 7, v{Z0+3}")
    E(f"v_mov_b32_dpp v{Z0+8}, v{Z0+2} row_shr:1 row_mask:0xf bank_mask:0xf")
    E(f"v_cmp_lt_i32 s[{S_MASK}:{S_MASK+1}], s11, v{Z0+2}")
    E(f"v_readlane_b32 s10, v{Z0+2}, s{S_G}")
    E(f"v_add_u32 v{Z0+8}, 1024, v{Z0+8}")
    E(f"v_readlane_b32 s{S_LB}, v{Z0+3}, s{S_G}")
    E(f"v_cmp_lt_i32 vcc, v{Z0+3}, v{Z0+8}")
    E(f"v_readfirstlane_b32 s{S_MASK+1}, v{Z0+9}")
    E(f"s_or_b32 s11, vcc_lo, s{S_MASK}")
    E(f"s_or_b32 s11, s11, s{S_MASK+1}")
    E(f"s_and_b32 s11, s11, 0xff")
    E("s_cbranch_scc1 M_slowinit")
    E(f"v_add_u32 v{LPX}, s{S_LB}, v{LPX}")
    E(f"v_add3_u32 v{LPE}, v{LPE}, s{S_LB}, 4")
    E(f"s_sub_u32 s{S_NT}, s10, s{S_LB}")
    E(f"v_add_u32 v{Z0+5}, s10, v{Z0+5}")
    E(f"ds_write_b64 v{Z0+5}, {vr(Z0+6,2)}")
    E(f"ds_write_b64 v{Z0+5}, {vr(Z0+6,2)} offset:512")
    E(f"s_add_u32 s10, s{S_LB}, 2")
    E(f"v_add_u32 v{LPZ}, s10, v{LPZ}")
    E(f"v_add3_u32 v{LPS}, v{LPS}, v{Z0+4}, s10")
    E(f"s_add_u32 s{S_NT}, s{S_NT}, 255")
    E(f"s_lshr_b32 s{S_NT}, s{S_NT}, 8")
    E("s_waitcnt lgkmcnt(0)")
    lead = opt.get("lead", 1)
    def fill(t):
        rd_list_dma(E, t)
        E.need([EPR])
        E(f"v_and_b32 v{EPR}, {EMASK}, v{EPR}")
        for g in dma_tile(E, t):
            reg = int(re.search(r"v\[(\d+):", g[2]).group(1))
            E(g[0]); E.need([reg]); E(g[1]); E(g[2])
    if opt.get("leadprio", 3):
        E(f"s_lshr_b32 s10, s{S_WAVE}, 2")
        E(f"s_cmp_eq_u32 s10, {lead}")
        E("s_cbranch_scc0 M_fill0")
        E(f"s_setprio {opt.get('leadprio', 3)}")
        E.label("M_fill0")
    fill(0)
    stamp(E, opt, 1, 2)
    if opt.get("b3", 1): E("s_barrier")
    stamp(E, opt, 2, 2)
    fill(1)
    stamp(E, opt, 3, 2)
    E(f"s_cmp_eq_u32 s{S_NT}, 0")
    E(f"s_cbranch_scc1 M_exit")
    rd_dz(E, 0)
    for w in range(4): rd_ds(E, 0, w)
    rd_list_dma(E, 2)
    for i in range(16): E(f"v_mov_b32 v{H+i}, 0")
    for i in range(8): E(f"v_mov_b32 v{S+i}, 0")
    E.need([DZ] + rng(DS, 4))
    E(f"v_mad_u32_u24 v{DZ}, v{DZ}, s{S_80}, v{CZ}")
    for w in range(4): E(f"v_mad_u32_u24 v{DS+w}, v{DS+w}, s{S_80}, v{CS}")
    rd_oh(E, 0); rd_oh(E, 1)
    E.need([EPR])
    E(f"v_and_b32 v{EPR}, {EMASK}, v{EPR}")
    E.need(rng(OH, 4))
    E(mfma(Z0, OH, xa(0, 0), None))
    E.need(rng(OH + 4, 4))
    E(mfma(Z0, OH + 4, xa(1, 0), Z0))
    E("s_waitcnt vmcnt(5)")
    stamp(E, opt, 4, 2)
    rd_e(E, 0)
    for s_ in range(4): rd_x(E, s_, 0)
    E.need(rng(EE, 4))
    E(mfma(Z0, EE, wc(0), Z0))
    for s_ in range(4):
        E.need(rng(X + 4 * s_, 4))
        E(mfma(Z0, X + 4 * s_, wb(s_, 0), Z0))
    assert not E.pend
    for g in dma_tile(E, 0):
        for i in g: E(i)
    stamp(E, opt, 5, 2)
    if opt.get("prof"):
        E(f"s_mov_b32 s74, s{S_NT}")
        if opt.get("prof") in (1, 4): E(f"s_mov_b32 s74, s{S_MAX}")
        E("s_memtime s[72:73]")
        E("s_waitcnt lgkmcnt(0)")
    E.label("M_loop")
    tile_body(E, 0, opt)
    E(f"s_sub_u32 s{S_NT}, s{S_NT}, 1")
    E(f"s_cmp_eq_u32 s{S_NT}, 0")
    E("s_cbranch_scc1 M_drain")
    tile_body(E, 1, opt)
    E(f"s_sub_u32 s{S_NT}, s{S_NT}, 1")
    E(f"s_cmp_lg_u32 s{S_NT}, 0")
    E("s_cbranch_scc1 M_loop")
    E.label("M_drain")
    for i in range(8): E(f"v_cvt_pk_bf16_f32 v{MSG+i}, v{H+2*i}, v{H+2*i+1}")
    E("s_nop 1")
    E(mfma(ACC + 16, S, MSG, ACC + 16))
    E(mfma(ACC + 16, S + 4, MSG + 4, ACC + 16))
    E.label("M_exit")
    E(f"s_cmp_eq_u32 s{S_SLOW}, 0")
    E("s_cbranch_scc1 M_epi")
    E("s_waitcnt vmcnt(0) lgkmcnt(0)")
    E(f"s_add_u32 s{S_J}, s{S_J}, 512")
    E(f"s_cmp_ge_u32 s{S_J}, {N_EDGES}")
    E("s_cbranch_scc1 M_epi")
    E.label("M_batch")
    E("s_setprio 0")
    E("s_load_dwordx4 s[44:47], s[0:1], 16")
    E("s_nop 7")
    E("s_nop 7")
    E("s_barrier")
    reset_cnt(0, Z0 + 8)
    E(f"v_add_u32 v{H+1}, s{S_J}, v{TID}")
    E(f"v_lshlrev_b32 v{H+4}, 2, v{H+1}")
    E("s_waitcnt lgkmcnt(0)")
    srd(E, 60, 46, 47, N_EDGES * 4)
    srd(E, 64, 44, 45, N_EDGES * 4)
    E(f"buffer_load_dword v{H+2}, v{H+4}, s[60:63], 0 offen")
    E(f"buffer_load_dword v{H}, v{H+4}, s[64:67], 0 offen")
    E("s_mov_b32 s46, 85599")
    E(f"s_mov_b32 s48, 0")
    E(f"s_mov_b32 s49, {1 << 29}")
    E(f"s_mov_b32 s50, {N_EDGES}")
    E(f"v_mov_b32 v{H+6}, -49")
    E(f"v_mov_b32 v{E8}, 8")
    E(f"v_cmp_gt_u32 s[40:41], s50, v{H+1}")
    E("s_waitcnt vmcnt(0)")
    rec_calc(E, opt, [(H + 2, H, H + 1, H + 3, H + 5)], 46, 48, 49, H + 6, None, False)
    E(f"v_lshl_or_b32 v{H}, v{H+2}, 16, v{H}")
    E(f"v_lshrrev_b32 v{H+3}, 2, v{H+3}")
    E(f"v_cmp_eq_u32 vcc, s3, v{H+3}")
    E("s_barrier")
    E("s_and_b64 exec, vcc, s[40:41]")
    E(f"v_lshrrev_b32 v{Z0}, 26, v{H+1}")
    E(f"ds_add_rtn_u32 v{Z1}, v{Z0}, v{E8} offset:{CNT}")
    E("s_waitcnt lgkmcnt(0)")
    E(f"ds_write_b64 v{Z1}, {vr(H,2)}")
    E("s_mov_b64 exec, -1")
    E("s_waitcnt lgkmcnt(0)")
    E("s_barrier")
    E("s_branch M_entry")
    E.label("M_slowinit")
    E(f"s_mov_b32 s{S_SLOW}, 1")
    E(f"s_mov_b32 s{S_J}, 0")
    E(f"v_mov_b32 v{VT}, 1")
    E(f"v_mov_b32 v{Z0}, 0")
    E(f"s_cmp_eq_u32 s{S_WAVE}, 1")
    E("s_cbranch_scc0 M_batch")
    E("s_mov_b64 exec, 1")
    E(f"buffer_atomic_add v{VT}, v{Z0}, s[4:7], 0 offen sc0 sc1")
    E("s_mov_b64 exec, -1")
    E("s_branch M_batch")
    E.label("M_epi")
    stamp(E, opt, 6)
    if opt.get("prof"):
        E("s_memtime s[92:93]")
        E("s_waitcnt lgkmcnt(0)")
        E("s_sub_u32 s92, s92, s72")
        E("s_lshl_b32 s92, s92, 8")
        E("s_or_b32 s74, s74, s92")
    E(f"s_mov_b32 s10, {NLOG2E}")
    E(f"v_and_b32 v{TMP}, 31, v{TID}")
    E(f"v_lshlrev_b32 v{TMP}, 2, v{TMP}")
    E(f"v_and_b32 v{TMP+1}, 32, v{TID}")
    E(f"v_lshl_add_u32 v{TMP}, v{TMP+1}, 4, v{TMP}")
    E(f"v_readfirstlane_b32 s11, v{VT}")
    E(f"v_mov_b32 v{TMP+2}, 4")
    E(f"v_mov_b32 v{TMP+3}, s{S_T0}")
    E("s_cmp_eq_u32 s11, 255")
    E("s_cbranch_scc0 M_noep")
    E(f"buffer_store_dword v{TMP+3}, v{TMP+2}, s[{S_WS}:{S_WS+3}], 0 offen")
    E.label("M_noep")
    E(f"s_lshl_b32 s11, s{S_NODE}, 7")
    E("s_nop 7")
    regs = [ACC + r for r in range(13)] + [ACC + 16 + r for r in range(13)]
    tmp = {a: Z0 + (a - ACC) for a in regs}
    for a in regs: E(f"v_mul_f32 v{tmp[a]}, s10, v{a}")
    for a in regs: E(f"v_exp_f32 v{tmp[a]}, v{tmp[a]}")
    for a in regs: E(f"v_add_f32 v{tmp[a]}, 1.0, v{tmp[a]}")
    for a in regs: E(f"v_rcp_f32 v{tmp[a]}, v{tmp[a]}")
    for a in regs: E(f"v_mul_f32 v{a}, v{a}, v{tmp[a]}")
    of = opt.get("out_flags", "sc1")
    for r in range(13):
        E(f"v_cvt_pk_bf16_f32 v{H+r}, v{ACC+r}, v{ACC+16+r}")
        if r < 12:
            E(f"buffer_store_dword v{H+r}, v{TMP}, s[{S_OUT}:{S_OUT+3}], s11 offen offset:{((r&3)+8*(r>>2))*128} {of}")
    E(f"s_cmp_lt_u32 s{S_WAVE}, 4")
    E("s_cbranch_scc0 M_end2")
    E("s_mov_b32 exec_hi, 0")
    E(f"buffer_store_dword v{H+12}, v{TMP}, s[{S_OUT}:{S_OUT+3}], s11 offen offset:{24*128} {of}")
    E.label("M_end2")
    prof_out(E, opt, S_WS, S_WAVE, 0x100000, 8, 74)
    E.label("M_end")
    E("s_endpgm")

def desc(name, vgpr, sgpr=102):
    acc = (vgpr + 3) // 4 * 4
    return [".p2align 6", f".amdhsa_kernel {name}", f"  .amdhsa_next_free_vgpr {vgpr}",
            f"  .amdhsa_next_free_sgpr {sgpr}", f"  .amdhsa_accum_offset {acc}",
            "  .amdhsa_group_segment_fixed_size 0", "  .amdhsa_kernarg_size 80",
            "  .amdhsa_user_sgpr_count 2", "  .amdhsa_user_sgpr_kernarg_segment_ptr 1",
            "  .amdhsa_system_sgpr_workgroup_id_x 1", ".end_amdhsa_kernel"]

def generate(opt):
    global EFLAGS, EMASK
    EMASK = opt.get("emask", 0x1fffff)
    EFLAGS = opt.get("e_flags", "")
    ref = open(f"cdna_kernels/{NAME}.s.ref").read().split("\n")
    hdr = [l for l in ref if l.startswith(";") and "@launch" not in l and "Override" not in l and "Harness parses" not in l]
    out = hdr[:]
    if opt.get("aslist"):
        out.append(f"; @launch kernel={NAME}_kernel grid=(256,1,1) block=(512,1,1) lds={K2_LDS}")
    else:
        out.append(f"; @launch grid=(256,1,1) block=(512,1,1) lds={K2_LDS}")
    out.append('.amdgcn_target "amdgcn-amd-amdhsa--gfx950"')
    out.append(".text")
    nm = NAME + "_kernel"
    out += [f".globl {nm}", ".p2align 8", f".type {nm},@function"]
    E = Em(); gen_k(E, opt); out += E.L
    out.append('.section .rodata,"a"')
    out += desc(nm, 256 if opt.get("pf") else K2_VGPR)
    return "\n".join(out) + "\n"

if __name__ == "__main__":
    opt = {}
    path = f"cdna_kernels/{NAME}.s"
    for a in sys.argv[1:]:
        k, v = a.split("=", 1)
        if k == "out": path = v
        else:
            try: v = eval(v)
            except Exception: pass
            opt[k] = v
    open(path, "w").write(generate(opt))
    print("wrote", path)
```

```python
import sys, re

NAME = "gather_scatter__edge_featured_mpnn_egc__graph"
N_NODES = 50000
N_EDGES = 800000
CH = 3128
SL_OFF = 0x100000
SL_LINE = 0x800000
NLINE = 2
WS_USE = SL_OFF + NLINE * SL_LINE
NLOG2E = 0xBFB8AA3B

class Em:
    def __init__(self):
        self.L = []
        self.pend = []
    def __call__(self, s):
        self.L.append("    " + s)
    def label(self, s):
        self.L.append(s + ":")
    def c(self, s):
        self.L.append("    ; " + s)
    def ds(self, s, dst=()):
        self(s)
        self.pend.append(set(dst))
        assert len(self.pend) <= 15, "too many outstanding LDS ops"
    def need(self, regs):
        regs = set(regs)
        last = -1
        for i, d in enumerate(self.pend):
            if d & regs:
                last = i
        if last >= 0:
            n = len(self.pend) - 1 - last
            self(f"s_waitcnt lgkmcnt({n})")
            self.pend = self.pend[last + 1:]
    def drain(self):
        self("s_waitcnt lgkmcnt(0)")
        self.pend = []

PROF_OFF = 0x4000000
def stamp(E, opt, i, only=None):
    if opt.get("prof") and (only is None or opt.get("prof") == only):
        E(f"s_memrealtime s[{76+2*i}:{77+2*i}]")
        E(f"s_memtime s[94:95]")
        E("s_waitcnt lgkmcnt(0)")
        E(f"s_mov_b32 s{77+2*i}, s94")
        E.pend = []
def prof_out(E, opt, wslo, wavereg, base, n, extra=None):
    if not opt.get("prof"): return
    E("s_waitcnt vmcnt(0)")
    stamp(E, opt, n - 1)
    E("s_mov_b64 exec, 1")
    if opt.get("leak") is not None:
        i, j, lb, lm = opt["leak"]
        E(f"s_cmp_eq_u32 s{wavereg}, 4")
        E("s_cbranch_scc0 M_end")
        if i >= 100:
            E(f"s_sub_u32 s96, s{77+2*(i-100)}, s{77+2*j}")
            E("s_lshr_b32 s96, s96, 4")
        else:
            E(f"s_sub_u32 s96, s{76+2*i}, s{76+2*j}")
        E("s_min_u32 s96, s96, 10000")
        E(f"s_mul_i32 s96, s96, {lm}")
        E(f"s_add_u32 s96, s96, {lb}")
        E.label("M_leak")
        E("s_sleep 2")
        E("s_memrealtime s[98:99]")
        E("s_waitcnt lgkmcnt(0)")
        E("s_sub_u32 s98, s98, s76")
        E("s_cmp_lt_u32 s98, s96")
        E("s_cbranch_scc1 M_leak")
        return
    if opt.get("dbgout"):
        E(f"s_cmp_eq_u32 s{wavereg}, 4")
        E("s_cbranch_scc0 M_end")
        E("v_mov_b32 v1, 0")
        for q, i in enumerate((5, 6, 7)):
            E(f"v_mov_b32 v2, s{76+2*i}")
            E(f"buffer_atomic_umax v2, v1, s[4:7], 0 offen offset:{4+4*q} sc1")
        for q, i in enumerate((0,)):
            E(f"s_not_b32 s96, s{76+2*i}")
            E(f"v_mov_b32 v2, s96")
            E(f"buffer_atomic_umax v2, v1, s[4:7], 0 offen offset:{16+4*q} sc1")
        E("s_cmp_eq_u32 s2, 77")
        E("s_cbranch_scc0 M_end")
        for q, r in enumerate((76, 78, 80, 82, 84, 86, 88, 90, 87, 89, extra)):
            E(f"v_mov_b32 v2, s{r}")
            E(f"buffer_store_dword v2, v1, s[4:7], 0 offen offset:{20+4*q} sc1")
        return
    E(f"s_mov_b32 s96, s{wslo}")
    E(f"s_mov_b32 s97, s{wslo+1}")
    E(f"s_mov_b32 s98, {PROF_OFF + 0x200000}")
    E("s_mov_b32 s99, 0x20000")
    E("s_lshl_b32 s100, s2, 3")
    E(f"s_add_u32 s100, s100, s{wavereg}")
    E("s_lshl_b32 s100, s100, 6")
    E(f"s_add_u32 s100, s100, {PROF_OFF + base}")
    E("v_mov_b32 v1, 0")
    for i in range(n):
        E(f"v_mov_b32 v2, s{76+2*i}")
        E(f"buffer_store_dword v2, v1, s[96:99], s100 offen offset:{4*i}")
        if i < 7:
            E(f"v_mov_b32 v2, s{77+2*i}")
            E(f"buffer_store_dword v2, v1, s[96:99], s100 offen offset:{32+4*i}")
    if extra is not None:
        E(f"v_mov_b32 v2, s{extra}")
        E(f"buffer_store_dword v2, v1, s[96:99], s100 offen offset:60")

def vr(a, n=1):
    return f"v{a}" if n == 1 else f"v[{a}:{a+n-1}]"
def sr(a, n=1):
    return f"s{a}" if n == 1 else f"s[{a}:{a+n-1}]"
def rng(a, n):
    return list(range(a, a + n))

def srd(E, d, lo, hi, nrec, stride=0):
    E(f"s_mov_b32 s{d}, s{lo}")
    if stride:
        E(f"s_or_b32 s{d+1}, s{hi}, {stride << 16}")
    else:
        E(f"s_mov_b32 s{d+1}, s{hi}")
    E(f"s_mov_b32 s{d+2}, {nrec}")
    E(f"s_mov_b32 s{d+3}, 0x20000")

TZ = 0
TS = 2560
CNT = 5120
FLG = 5184
WST = 5376
ER = 40192
XR = 56576
LIST = 122112
STG = ER
SSTR = 400
INV0 = 0xFFFF
LCAP = 640
K2_LDS = 163840
CEN0 = 288

WB = 0
WV = 32
WC = 64
XA = 72
ACC = 88
Z0 = 120
Z1 = 136
H = 152
X = 168
EE = 184
OH = 188
S = 196
MSG = 204
XP = 212
EPR = 220
DZ = 222
CZ = 223
DS = 224
CS = 228
XAD = 229
EAD = 233
LPX = 234
LPE = 235
LPZ = 236
LPS = 237
VT = 238
TID = 239
TMP = 240
K2_VGPR = 248

def wb(s, f): return WB + (s * 2 + f) * 4
def wv(s, f): return WV + (s * 2 + f) * 4
def wc(f): return WC + f * 4
def xa(s, f): return XA + (s * 2 + f) * 4
def zb(f): return Z1 if f else Z0

def mfma(d, a, b, c):
    cs = "0" if c is None else vr(c, 16)
    return f"v_mfma_f32_32x32x16_bf16 {vr(d,16)}, {vr(a,4)}, {vr(b,4)}, {cs}"

S_X = 12
S_EP = 16
S_WS = 20
S_OUT = 24
S_WAVE = 28
S_G = 29
S_NT = 30
S_XR = 31
S_ER = 32
S_SLOW = 33
S_J = 34
S_MAX = 35
S_NODE = 36
S_LB = 37
S_T0 = 38
S_T1 = 39
S_MASK = 40
S_80 = 75
KINC = 87382
TMASK = 0xFFE0E0E0

EFLAGS = ""
EMASK = 0x1fffff
def dma_tile(E, slot, spacer=None):
    out = []
    out.append([f"s_add_u32 m0, s{S_ER}, {slot*1024}", "s_nop 0",
                f"buffer_load_dwordx4 {vr(EPR,2)}, s[{S_EP}:{S_EP+3}], 0 idxen offen {EFLAGS} lds"])
    for i in range(4):
        out.append([f"s_add_u32 m0, s{S_XR}, {slot*4096 + i*1024}", "s_nop 0",
                    f"buffer_load_dwordx4 {vr(XP+2*i,2)}, s[{S_X}:{S_X+3}], 0 idxen offen lds"])
    return out

def rd_list_dma(E, trel):
    E.ds(f"ds_read_b32 v{EPR}, v{LPE} offset:{trel*256}", [EPR])
    for i in range(4):
        E.ds(f"ds_read_u16 v{XP+2*i}, v{LPX} offset:{trel*256 + i*64}", [XP + 2 * i])

def rd_x(E, s, slot):
    E.ds(f"ds_read_b128 {vr(X+4*s,4)}, v{XAD+s} offset:{slot*4096}", rng(X + 4 * s, 4))
def rd_e(E, slot):
    E.ds(f"ds_read_b128 {vr(EE,4)}, v{EAD} offset:{slot*1024}", rng(EE, 4))
def rd_oh(E, s):
    E.ds(f"ds_read_b128 {vr(OH+4*s,4)}, v{DZ} offset:{s*32}", rng(OH + 4 * s, 4))
def rd_s(E, w):
    E.ds(f"ds_read_b64_tr_b16 {vr(S+2*w,2)}, v{DS+w}", rng(S + 2 * w, 2))
def rd_dz(E, trel):
    E.ds(f"ds_read_u16 v{DZ}, v{LPZ} offset:{trel*256}", [DZ])
def rd_ds(E, trel, w):
    E.ds(f"ds_read_u16 v{DS+w}, v{LPS} offset:{trel*256 + w*64}", [DS + w])

SH16 = {}
def tile_body(E, par, opt):
    prio = opt.get("prio", True)
    def P(n):
        if prio: E(f"s_setprio {n}")
    def M(d, a, b, c):
        E.need(rng(a, 4)); E.need(rng(b, 4))
        if opt.get("halfx") and a in (X + 4, X + 12): return
        if opt.get("nox") and a in (X + 4, X + 8, X + 12): return
        if opt.get("nox") and a == X and d != H: return
        if opt.get("shape16"):
            st = SH16.setdefault(d, [0, 0])
            if c is None: st[0] = 0; st[1] = 2
            for q in range(2):
                blk = d + 4 * (2 * st[0] + q)
                bb = b if q == 0 else (b ^ 8 if b < 64 else b ^ 4)
                cs = "0" if st[1] > 0 else vr(blk, 4)
                E(f"v_mfma_f32_16x16x32_bf16 {vr(blk,4)}, {vr(a,4)}, {vr(bb,4)}, {cs}")
            st[0] ^= 1
            if st[1] > 0: st[1] -= 1
            return
        if opt.get("nooh") and a == OH + 4: return
        E(mfma(d, a, b, c))
    for f in (0, 1):
        z = zb(f); zn = zb(f ^ 1); fn = f ^ 1
        ex = [f"v_exp_f32 v{z+i}, v{z+i}" for i in range(16)]
        rc = [f"v_rcp_f32 v{z+i}, v{z+i}" for i in range(16)]
        if opt.get("notrans"):
            ex = [f"v_mov_b32 v{z+i}, v{z+i}" for i in range(16)]; rc = ex
        cv = [f"v_cvt_pk_bf16_f32 v{MSG+i}, v{H+2*i}, v{H+2*i+1}" for i in range(8)]
        E.c(f"---- slot f={f} par={par} T1")
        P(1)
        M(zn, EE, wc(fn), None)
        if f == 0:
            rd_dz(E, par + 1)
        else:
            for w in range(4): rd_ds(E, par + 1, w)
        for i in range(4): E(cv[i])
        E(ex[0])
        M(zn, OH, xa(0, fn), zn)
        for i in range(4, 8): E(cv[i])
        E(ex[1])
        k = 2
        if f == 1: E("s_waitcnt vmcnt(%d)" % {0:5,1:5,2:4,3:1}[opt.get("nodma",0)])
        for s in range(4):
            M(H, X + 4 * s, wv(s, f), None if s == 0 else H)
            if f == 1: rd_x(E, s, par ^ 1)
            for i in range(3): E(ex[k]); k += 1
        M(ACC + 16 * fn, S, MSG, ACC + 16 * fn)
        E(ex[k]); E(ex[k + 1])
        M(ACC + 16 * fn, S + 4, MSG + 4, ACC + 16 * fn)
        if f == 0:
            for w in range(4): rd_s(E, w)
        E.c("P1")
        P(0)
        if opt.get("pk", 0) & 1:
            for i in range(8): E(f"v_pk_add_f32 {vr(z+2*i,2)}, {vr(z+2*i,2)}, 1.0 op_sel_hi:[1,0]")
        else:
            for i in range(16): E(f"v_add_f32 v{z+i}, 1.0, v{z+i}")
        if f == 0:
            E.need([DZ])
            E(f"v_mad_u32_u24 v{DZ}, v{DZ}, s{S_80}, v{CZ}")
        else:
            E.need([EPR])
            E(f"v_and_b32 v{EPR}, {EMASK}, v{EPR}")
        E.c("T2")
        P(1)
        M(zn, OH + 4, xa(1, fn), zn)
        if f == 0:
            E("s_waitcnt vmcnt(%d)" % {0:9,1:9,2:8,3:1}[opt.get("nodma",0)])
            rd_e(E, par ^ 1); rd_oh(E, 0); rd_oh(E, 1)
            rd_list_dma(E, par + 3)
        k = 0
        for i in range(3): E(rc[k]); k += 1
        for s in range(4):
            M(zn, X + 4 * s, wb(s, fn), zn)
            if s < 3:
                for i in range(3): E(rc[k]); k += 1
        if f == 1:
            assert not E.pend
            g = dma_tile(E, par ^ 1)
            for q in range(5):
                E(g[q][0])
                if k < 16: E(rc[k]); k += 1
                else: E("s_nop 0")
                if not (opt.get("nodma") == 1 or (opt.get("nodma") == 2 and q == 0) or (opt.get("nodma") == 3 and q > 0)): E(g[q][2])
        while k < 16: E(rc[k]); k += 1
        E.c("P2")
        P(0)
        if f == 1:
            for w in range(4): E(f"v_mad_u32_u24 v{DS+w}, v{DS+w}, s{S_80}, v{CS}")
            if par == 1:
                for r in (LPX, LPE, LPZ, LPS): E(f"v_add_u32 v{r}, 512, v{r}")
        if opt.get("pk", 0) & 2:
            for i in range(8): E(f"v_pk_mul_f32 {vr(H+2*i,2)}, {vr(H+2*i,2)}, {vr(z+2*i,2)}")
        else:
            for i in range(16): E(f"v_mul_f32 v{H+i}, v{H+i}, v{z+i}")
    assert not E.pend


def rec_calc(E, opt, items, s_mul, s_28, s_29, v_m49, mid=None, merge=True):
    for d, s, w, q, t in items: E(f"v_mul_u32_u24 v{q}, s{s_mul}, v{d}")
    for d, s, w, q, t in items: E(f"v_lshrrev_b32 v{q}, 22, v{q}")
    for it in items:
        d, s, w, q, t = it
        E(f"v_mad_i32_i24 v{d}, v{q}, v{v_m49}, v{d}")
        E(f"v_lshl_add_u32 v{w}, v{q}, 30, v{w}")
        if mid: mid(it)
    for d, s, w, q, t in items:
        E(f"v_subrev_u32 v{t}, 25, v{d}")
        E(f"v_and_or_b32 v{w}, v{t}, s{s_29}, v{w}")
        E(f"v_min_u32 v{d}, v{d}, v{t}")
        E(f"v_subrev_u32 v{t}, {opt.get('thr', 25000)}, v{s}")
        if opt.get("xmask"): E(f"v_and_b32 v{s}, {opt['xmask']}, v{s}")
        E(f"v_and_b32 v{t}, s{s_28}, v{t}")
        if merge: E(f"v_or3_b32 v{w}, v{w}, v{t}, v{s}")

def gen_k(E, opt):
    st = opt.get("st", "sc1")
    ld = opt.get("ld", "sc1")
    E.label(NAME + "_kernel")
    E("s_cmp_ge_u32 s2, 256")
    E("s_cbranch_scc1 M_end")
    stamp(E, opt, 0, 1); stamp(E, opt, 0, 3); stamp(E, opt, 0, 4)
    E("s_load_dwordx16 s[40:55], s[0:1], 0")
    E("s_load_dwordx4 s[56:59], s[0:1], 64")
    E(f"v_mov_b32 v{TID}, v0")
    E(f"v_lshrrev_b32 v{TMP}, 6, v0")
    E("s_and_b32 s10, s2, 7")
    E("s_lshr_b32 s11, s2, 3")
    E(f"v_readfirstlane_b32 s{S_WAVE}, v{TMP}")
    E("s_lshl_b32 s3, s10, 5")
    E("s_add_u32 s3, s3, s11")
    E(f"s_and_b32 s{S_J}, s11, 0x18")
    E(f"s_add_u32 s{S_J}, s{S_J}, s10")
    E(f"s_lshl_b32 s{S_J}, s{S_J}, 3")
    E("s_and_b32 s11, s11, 7")
    E(f"s_add_u32 s{S_J}, s{S_J}, s11")
    E(f"s_mul_i32 s72, s{S_J}, {CH*4}")
    E(f"s_add_u32 s73, s72, {CH*4}")
    E(f"s_min_u32 s73, s73, {N_EDGES*4}")
    E("s_add_u32 s74, s72, 8192")
    E("s_add_u32 s75, s72, 12288")
    L = TMP + 1
    T16, T8, T4 = 130, 131, 132
    E(f"v_lshlrev_b32 v{T16}, 4, v0")
    E(f"v_lshlrev_b32 v{T8}, 3, v0")
    E(f"v_lshlrev_b32 v{T4}, 2, v0")
    E(f"v_and_b32 v{L}, 63, v0")
    m, h, h16 = TMP + 2, TMP + 3, TMP + 5
    t6, t7 = TMP + 6, TMP + 7
    E(f"v_and_b32 v{m}, 31, v0")
    E(f"v_lshrrev_b32 v{h}, 5, v{L}")
    E(f"v_lshlrev_b32 v{h16}, 4, v{h}")
    E(f"s_and_b32 s10, s{S_WAVE}, 3")
    E(f"s_lshr_b32 s11, s{S_WAVE}, 2")
    E(f"s_lshl_b32 s{S_G}, s10, 1")
    E(f"s_add_u32 s{S_G}, s{S_G}, s11")
    E(f"s_xor_b32 s{S_G}, s{S_G}, 1")
    E(f"s_lshl_b32 s{S_T0}, s3, 2")
    E(f"s_add_u32 s{S_T0}, s10, s{S_T0}")
    E(f"s_mul_i32 s{S_T0}, s{S_T0}, 49")
    E(f"s_mul_i32 s11, s11, 25")
    E(f"s_add_u32 s{S_NODE}, s{S_T0}, s11")
    E(f"s_lshl_b32 s{S_T0}, s{S_WAVE}, 11")
    E(f"s_lshl_b32 s{S_T1}, s10, 11")
    if opt.get("tlbw", 0) == 2:
        E(f"v_lshlrev_b32 v134, 19, v{m}")
        E(f"v_add_u32 v134, 4, v134")
    else:
        E(f"v_mov_b32 v134, 4")
    E("s_waitcnt lgkmcnt(0)")
    srd(E, 60, 46, 47, "s73")
    srd(E, 64, 44, 45, "s73")
    D1, S1 = 88, 96
    E(f"buffer_load_dwordx4 v[{D1}:{D1+3}], v{T16}, s[60:63], s72 offen")
    E(f"buffer_load_dwordx4 v[{S1}:{S1+3}], v{T16}, s[64:67], s72 offen")
    E(f"buffer_load_dwordx2 v[{D1+4}:{D1+5}], v{T8}, s[60:63], s74 offen")
    E(f"buffer_load_dwordx2 v[{S1+4}:{S1+5}], v{T8}, s[64:67], s74 offen")
    E(f"buffer_load_dword v{D1+6}, v{T4}, s[60:63], s75 offen")
    E(f"buffer_load_dword v{S1+6}, v{T4}, s[64:67], s75 offen")
    srd(E, S_WS, 58, 59, WS_USE)
    E(f"buffer_load_dword v{VT}, v134, s[{S_WS}:{S_WS+3}], 0 offen")
    stamp(E, opt, 1, 3)
    E(f"v_mov_b32 v136, {INV0}")
    E(f"v_mov_b32 v137, {INV0}")
    E(f"v_mov_b32 v138, {INV0}")
    E("v_mov_b32 v139, 0")
    E(f"v_lshrrev_b32 v134, 4, v0")
    E(f"v_mul_u32_u24 v134, {SSTR - 256}, v134")
    E(f"v_add_u32 v134, v134, v{T16}")
    E(f"v_add_u32 v135, {STG + 64*SSTR}, v134")
    E(f"ds_write_b32 v{T4}, v139 offset:{TZ}")
    for k in range(8):
        E(f"ds_write_b128 v{134 if k < 2 else 135}, v[136:139] offset:{STG + k*32*SSTR if k < 2 else (k-2)*32*SSTR}")
    srd(E, 4, 52, 53, 18432)
    E(f"s_cmp_lt_u32 s{S_WAVE}, 4")
    E("s_cselect_b32 s68, s50, s48")
    E("s_cselect_b32 s69, s51, s49")
    E("s_mov_b32 s70, 8192")
    E("s_mov_b32 s71, 0x20000")
    srd(E, S_X, 40, 41, N_NODES, 128)
    srd(E, S_EP, 42, 43, N_EDGES, 32)
    srd(E, S_OUT, 54, 55, N_NODES * 128)
    E(f"s_lshl_b32 s{S_XR}, s{S_WAVE}, 13")
    E(f"s_add_u32 s{S_XR}, s{S_XR}, {XR}")
    E(f"s_lshl_b32 s{S_ER}, s{S_WAVE}, 11")
    E(f"s_add_u32 s{S_ER}, s{S_ER}, {ER}")
    E(f"s_mov_b32 s{S_SLOW}, 0")
    PA = TMP + 4
    E(f"v_lshlrev_b32 v{PA}, 4, v{L}")
    E(f"v_and_b32 v{t6}, 7, v{L}")
    E(f"v_lshrrev_b32 v{t7}, 4, v{L}")
    E(f"v_xor_b32 v{t6}, v{t6}, v{t7}")
    E(f"v_lshlrev_b32 v{XP+1}, 4, v{t6}")
    E(f"v_xor_b32 v{XP+3}, 64, v{XP+1}")
    E(f"v_mov_b32 v{XP+5}, v{XP+1}")
    E(f"v_mov_b32 v{XP+7}, v{XP+3}")
    E(f"v_and_b32 v{t6}, 1, v{t6}")
    E(f"v_lshlrev_b32 v{EPR+1}, 4, v{t6}")
    E(f"v_lshrrev_b32 v{t7}, 3, v{L}")
    E(f"v_add_u32 v{XP}, s{S_NODE}, v{t7}")
    for i in range(1, 4): E(f"v_add_u32 v{XP+2*i}, {8*i}, v{XP}")
    for i in range(4): E(f"v_mov_b32 v{X+12+i}, 0")
    W1, Q, RT, TT = 104, 112, 120, 140
    E("s_sub_u32 s73, s73, s72")
    E(f"v_cmp_gt_u32 s[40:41], s73, v{T16}")
    E(f"v_add_u32 v{T8}, 8192, v{T8}")
    E(f"v_add_u32 v134, 12288, v{T4}")
    E(f"v_cmp_gt_u32 s[42:43], s73, v{T8}")
    E(f"v_cmp_gt_u32 s[44:45], s73, v134")
    E("s_mov_b32 s46, 85599")
    E(f"s_mov_b32 s48, {1 << 28}")
    E(f"s_mov_b32 s49, {1 << 29}")
    E(f"s_mov_b32 s50, {64 << 16}")
    E(f"s_mov_b32 s51, {STG}")
    E("v_mov_b32 v128, -49")
    E(f"v_mov_b32 v135, {KINC}")
    E(f"v_lshlrev_b32 v{W1}, 16, v{T4}")
    for j in range(1, 4): E(f"v_add_u32 v{W1+j}, {j << 16}, v{W1}")
    E(f"v_lshlrev_b32 v{W1+4}, 14, v{T8}")
    E(f"v_add_u32 v{W1+5}, {1 << 16}, v{W1+4}")
    E(f"v_lshlrev_b32 v{W1+6}, 14, v134")
    CA0, CA1, CC0, CG = 148, 149, 150, 147
    E(f"v_lshrrev_b32 v{CC0}, 3, v{TID}")
    E(f"v_and_b32 v{CA0}, 7, v{TID}")
    E(f"v_and_b32 v129, {8 - opt.get('gran', 2)}, v{TID}")
    E(f"v_lshlrev_b32 v129, 18, v129")
    E(f"v_lshlrev_b32 v{CA0}, 4, v{CA0}")
    E(f"v_lshl_add_u32 v{CG}, v{CC0}, 15, v{CA0}")
    E(f"v_mul_u32_u24 v{CA1}, {SSTR}, v{CC0}")
    E(f"v_lshlrev_b32 v{CC0}, 2, v{CC0}")
    E(f"v_add3_u32 v{CA0}, v{CA0}, v{CA1}, s51")
    E(f"v_add_u32 v{CA1}, {128*SSTR}, v{CA0}")
    E("s_waitcnt lgkmcnt(0)")
    stamp(E, opt, 2, 3)
    E("s_barrier")
    def wdma(srdr, so, lo, lreg=None):
        for k in range(2):
            if lreg is None: E(f"s_mov_b32 m0, {WST + lo + k*1024}")
            else: E(f"s_add_u32 m0, s{lreg}, {WST + lo + k*1024}")
            if k: E(f"s_add_u32 s{so}, s{so}, 1024")
            else: E("s_nop 0")
            E(f"buffer_load_dwordx4 v{PA}, s[{srdr}:{srdr+3}], s{so} offen lds")
    def xgrp():
        for i in range(4):
            if i == 3 and opt.get("x25", 1): E("s_mov_b64 exec, 0xff")
            E(f"buffer_load_dwordx4 {vr(X+4*i,4)}, {vr(XP+2*i,2)}, s[{S_X}:{S_X+3}], 0 idxen offen")
        E("s_mov_b64 exec, -1")
    def ncl():
        E(f"s_lshl_b32 s10, s{S_WAVE}, 11")
        wdma(4, S_T0, 0, 10)
        wdma(68, S_T1, 18 * 1024, 10)
        xgrp()
    nc = opt.get("nc", 0)
    tw = opt.get("tlbw", 0)
    if tw == 1:
        E(f"s_lshl_b32 s10, s{S_WAVE}, 21")
        E(f"s_add_u32 s10, s10, {SL_OFF}")
        E(f"v_lshlrev_b32 v133, 19, v{L}")
        E("s_mov_b64 exec, 0xf")
        E(f"buffer_load_dword v133, v133, s[{S_WS}:{S_WS+3}], s10 offen")
        E("s_mov_b64 exec, -1")
    w0 = 1 + (tw == 1)
    if nc == 0:
        ncl()
        stamp(E, opt, 3, 3)
        E(f"s_waitcnt vmcnt({8 + w0})")
    elif nc == 1:
        E(f"s_cmp_lt_u32 s{S_WAVE}, 4")
        E("s_cbranch_scc0 M_nc0")
        ncl()
        E(f"s_waitcnt vmcnt({8 + w0})")
        E("s_branch M_nc1")
        E.label("M_nc0")
        E(f"s_waitcnt vmcnt({w0})")
        E.label("M_nc1")
    else:
        E(f"s_waitcnt vmcnt({w0})")
    stamp(E, opt, 1, 1); stamp(E, opt, 4, 3)
    def mid(it):
        d, s, w, q, t = it
        E(f"v_and_b32 v{q}, 0x3fc, v{q}")
        E(f"ds_add_rtn_u32 v{RT + q - Q}, v{q}, v135 offset:{TZ}")
        E(f"v_mul_u32_u24 v{q}, {SSTR // 4}, v{q}")
    groups = [(40, range(0, 4)), (42, range(4, 6)), (44, range(6, 7))]
    for gi, (sm, js) in enumerate(groups):
        E(f"s_mov_b64 exec, s[{sm}:{sm+1}]")
        if gi == 2: E("s_cbranch_execz M_nog3a")
        rec_calc(E, opt, [(D1 + j, S1 + j, W1 + j, Q + j, TT + j) for j in js], 46, 48, 49, 128, mid)
    def put(j):
        E(f"v_min_u32 v{RT+j}, s50, v{RT+j}")
        E(f"v_mad_u32_u16 v{Q+j}, v{RT+j}, 4, v{Q+j} op_sel:[1,0,0,0]")
        E(f"v_bfe_u32 v{RT+j}, v{RT+j}, 16, 2")
        E(f"ds_write_b32 v{Q+j}, v{W1+j} offset:{STG}")
        E(f"v_mad_i32_i24 v{Q+j}, v{RT+j}, -3, v{Q+j}")
        E(f"ds_write_b8 v{Q+j}, v{D1+j} offset:{STG+12}")
    E("s_waitcnt lgkmcnt(0)")
    put(6)
    E.label("M_nog3a")
    E("s_waitcnt lgkmcnt(2)")
    for gi, (sm, js) in enumerate(groups[:2]):
        E(f"s_mov_b64 exec, s[{sm}:{sm+1}]")
        if gi == 1: E("s_waitcnt lgkmcnt(8)")
        for j in js: put(j)
    E("s_mov_b64 exec, -1")
    def jobc(lab):
        E(f"s_cmp_eq_u32 s{S_WAVE}, 7")
        E(f"s_cbranch_scc0 {lab}")
        E(f"s_mov_b32 s{S_T0}, {8*2048}")
        wdma(4, S_T0, 16 * 1024)
        E.label(lab)
    if nc == 1:
        E(f"s_cmp_lt_u32 s{S_WAVE}, 4")
        E("s_cbranch_scc1 M_nc2")
        ncl()
        E.label("M_nc2")
    if nc == 2: ncl()
    E(f"s_waitcnt vmcnt({(8 if nc < 3 else 0) + w0 - 1})")
    if nc < 3: jobc("M_nojc0")
    S_TAG, S_TM = 72, 73
    E(f"v_readfirstlane_b32 s{S_TAG}, v{VT}")
    E(f"s_lshl_b32 s74, s{S_J}, 7")
    E(f"s_add_u32 s74, s74, {SL_OFF}")
    E(f"s_mov_b32 s{S_TM}, {TMASK}")
    E(f"s_orn2_b32 s{S_TAG}, s{S_TAG}, s{S_TM}")
    E(f"s_add_u32 s{S_TAG}, s{S_TAG}, 1")
    E(f"s_and_b32 s{S_TAG}, s{S_TAG}, s{S_TM}")
    E(f"s_mov_b32 s51, {32 << 16}")
    E("s_waitcnt lgkmcnt(0)")
    stamp(E, opt, 5, 3)
    E("s_barrier")
    stamp(E, opt, 2, 1)
    CD = 88
    for k in range(4):
        E(f"ds_read_b32 v{120+k}, v{CC0} offset:{TZ + k*256}")
        E(f"ds_read_b128 {vr(CD+4*k,4)}, v{CA0 if k < 2 else CA1} offset:{(k&1)*64*SSTR}")
    for k in range(4):
        E(f"s_waitcnt lgkmcnt({6-2*k})")
        E(f"v_cmp_le_u32 vcc, v129, v{120+k}")
        E(f"v_or_b32 v{CD+4*k+3}, s{S_TAG}, v{CD+4*k+3}")
        E(f"s_add_u32 s75, s74, {k*0x200000}")
        E("s_mov_b64 exec, vcc")
        E(f"buffer_store_dwordx4 {vr(CD+4*k,4)}, v{CG}, s[{S_WS}:{S_WS+3}], s75 offen {st}")
        E("s_mov_b64 exec, -1")
    E(f"v_max_u32 v120, v120, v121")
    E(f"v_max3_u32 v124, v120, v122, v123")
    E(f"v_cmp_le_u32 vcc, s51, v124")
    E("s_cbranch_vccz M_no2")
    E("s_mov_b64 exec, vcc")
    for k in range(4):
        E(f"ds_read_b128 {vr(CD+16+4*k,4)}, v{CA0 if k < 2 else CA1} offset:{(k&1)*64*SSTR + 128}")
    E("s_waitcnt lgkmcnt(0)")
    for k in range(4):
        E(f"v_or_b32 v{CD+16+4*k+3}, s{S_TAG}, v{CD+16+4*k+3}")
        E(f"s_add_u32 s75, s74, {k*0x200000 + SL_LINE}")
        E(f"buffer_store_dwordx4 {vr(CD+16+4*k,4)}, v{CG}, s[{S_WS}:{S_WS+3}], s75 offen {st}")
    E("s_mov_b64 exec, -1")
    E.label("M_no2")
    stamp(E, opt, 3, 1)
    if nc == 3:
        ncl(); jobc("M_nojc0")
    pfa, pfc = opt.get("pf", (0, 0))
    def pfx(i0, n):
        for i in range(i0, i0 + n):
            E(f"s_and_b32 s10, s2, 0xf8")
            E(f"s_add_u32 s10, s10, s{S_WAVE}")
            E(f"s_lshl_b32 s10, s10, 6")
            E(f"s_add_u32 s10, s10, {i*16384}")
            E(f"s_min_u32 s10, s10, {opt.get('pfmax', opt.get('thr', 25000)) - 64}")
            E(f"v_add_u32 v{250+i}, s10, v{L}")
            E(f"buffer_load_dword v{250+i}, v{250+i}, s[{S_X}:{S_X+3}], 0 idxen")
    pfx(0, pfa)
    srd(E, 4, 56, 57, 256)
    VB = TMP + 6
    E8 = TMP + 3
    WA = TMP + 5
    E(f"s_lshl_b32 s64, s3, 15")
    E(f"s_lshl_b32 s10, s{S_WAVE}, 12")
    E(f"s_add_u32 s64, s64, s10")
    E(f"s_add_u32 s64, s64, {SL_OFF}")
    for u in range(1, 4): E(f"s_add_u32 s{64+u}, s64, {u*1024}")
    def poll_ld(u):
        E(f"buffer_load_dwordx4 {vr(H+4*u,4)}, v{PA}, s[{S_WS}:{S_WS+3}], s{64+u} offen {ld}")
    pp = opt.get("pp", 1)
    E(f"v_lshlrev_b32 v57, 2, v{m}")
    E(f"v_lshl_add_u32 v57, v{h}, 10, v57")
    E(f"s_lshl_b32 s10, s{S_WAVE}, 11")
    E(f"s_add_u32 s10, s10, {WST}")
    E(f"v_add_u32 v58, s10, v57")
    E(f"v_add_u32 v56, s10, v{PA}")
    E(f"s_waitcnt vmcnt({(4 if nc < 3 else 0) + pfa})")
    stamp(E, opt, 1, 4)
    if pp == 0:
        for u in range(4): poll_ld(u)
    for j in range(8): E(f"ds_read_b32 v{j}, v58 offset:{j*128}")
    E(f"v_lshrrev_b32 v{t6}, 1, v{m}")
    E(f"v_and_b32 v{t6}, 7, v{t6}")
    E(f"v_xor_b32 v{t6}, v{t6}, v{h}")
    E(f"v_lshlrev_b32 v{t7}, 7, v{m}")
    E(f"v_add_u32 v{t7}, s{S_XR}, v{t7}")
    for s in range(4):
        E(f"v_xor_b32 v{XAD+s}, {2*s}, v{t6}")
        E(f"v_lshl_add_u32 v{XAD+s}, v{XAD+s}, 4, v{t7}")
    E(f"v_lshrrev_b32 v{t6}, 3, v{m}")
    E(f"v_and_b32 v{t6}, 1, v{t6}")
    E(f"v_xor_b32 v{t6}, v{t6}, v{h}")
    E(f"v_lshlrev_b32 v{t7}, 5, v{m}")
    E(f"v_add_u32 v{t7}, s{S_ER}, v{t7}")
    E(f"v_lshl_add_u32 v{EAD}, v{t6}, 4, v{t7}")
    E(f"v_add_u32 v{CZ}, {TZ}, v{h16}")
    E(f"v_and_b32 v{t6}, 16, v{L}")
    E(f"v_lshlrev_b32 v{t6}, 1, v{t6}")
    E(f"v_and_b32 v{t7}, 3, v{L}")
    E(f"v_lshl_add_u32 v{t6}, v{t7}, 3, v{t6}")
    E(f"v_add_u32 v{CS}, {TS}, v{t6}")
    E(f"v_add_u32 v{WA}, {WST}, v{PA}")
    E(f"s_cmp_lt_u32 s{S_WAVE}, 4")
    E(f"s_cselect_b32 s10, 1.0, {NLOG2E}")
    E("s_waitcnt lgkmcnt(0)")
    for j in range(8): E(f"ds_read_b32 v{8+j}, v58 offset:{18*1024 + j*128}")
    def scaled(R, sc, addr, off):
        for j in range(8):
            E(f"v_lshlrev_b32 v{24+j}, 16, v{R+j}")
            E(f"v_and_b32 v{R+j}, 0xffff0000, v{R+j}")
        for j in range(8):
            E(f"v_mul_f32 v{24+j}, s{sc}, v{24+j}")
            E(f"v_mul_f32 v{R+j}, s{sc}, v{R+j}")
        for j in range(4):
            E(f"v_cvt_pk_bf16_f32 v{32+j}, v{24+2*j}, v{25+2*j}")
            E(f"v_cvt_pk_bf16_f32 v{36+j}, v{R+2*j}, v{R+1+2*j}")
        E(f"ds_write_b128 v{addr}, v[32:35] offset:{off}")
        E(f"ds_write_b128 v{addr}, v[36:39] offset:{off+1024}")
    scaled(0, 10, 56, 0)
    E("s_mov_b32 s10, 0x05040100")
    E("s_mov_b32 s11, 0x07060302")
    E("s_waitcnt lgkmcnt(2)")
    for j in range(4):
        E(f"v_perm_b32 v{40+j}, v{9+2*j}, v{8+2*j}, s10")
        E(f"v_perm_b32 v{44+j}, v{9+2*j}, v{8+2*j}, s11")
    E(f"ds_write_b128 v56, v[40:43] offset:{18*1024}")
    E(f"ds_write_b128 v56, v[44:47] offset:{19*1024}")
    E(f"s_cmp_eq_u32 s{S_WAVE}, 7")
    E("s_cbranch_scc0 M_nojc")
    for j in range(8): E(f"ds_read_b32 v{16+j}, v57 offset:{WST + 16*1024 + j*128}")
    E(f"s_mov_b32 s10, {NLOG2E}")
    E("s_waitcnt lgkmcnt(0)")
    scaled(16, 10, WA, 16 * 1024)
    E.label("M_nojc")
    def reset_cnt(cen, R):
        E(f"v_and_b32 v{R}, 31, v{TID}")
        E(f"v_lshrrev_b32 v{R+1}, 1, v{R}")
        E(f"v_mul_u32_u24 v{R+1}, {LCAP*8}, v{R+1}")
        E(f"v_and_b32 v{R+2}, 1, v{R}")
        E(f"v_add_u32 v{R+1}, {LIST + cen*8}, v{R+1}")
        E(f"v_cmp_eq_u32 vcc, 1, v{R+2}")
        E(f"v_sub_u32 v{R+2}, 7, v{R+1}")
        E("s_nop 0")
        E(f"v_cndmask_b32 v{R+1}, v{R+1}, v{R+2}, vcc")
        E(f"v_cmp_gt_u32 vcc, 16, v{R}")
        E(f"v_lshlrev_b32 v{R}, 2, v{R}")
        E("s_nop 0")
        E(f"v_cndmask_b32 v{R+1}, 0, v{R+1}, vcc")
        E(f"ds_write_b32 v{R}, v{R+1} offset:{CNT}")
    TB = 140
    E(f"s_cmp_eq_u32 s{S_WAVE}, 6")
    E("s_cbranch_scc0 M_nocnt")
    reset_cnt(opt.get('cen', CEN0), TB)
    E.label("M_nocnt")
    E(f"v_add_u32 v60, s{S_XR}, v{PA}")
    for u in range(4):
        E(f"s_mov_b64 s[{40+2*u}:{41+2*u}], -1")
    E(f"s_mov_b32 s{S_T1}, {LIST}")
    E(f"s_mov_b32 s{S_MAX}, 0")
    E("s_waitcnt lgkmcnt(0)")
    E("s_barrier")
    stamp(E, opt, 2, 4)
    if pp == 1:
        for u in range(4): poll_ld(u)
        pfx(pfa, pfc)
    for i in range(4):
        E(f"ds_write_b128 v60, {vr(X+4*i,4)} offset:{i*1024}")
    E(f"s_cmp_eq_u32 s{S_WAVE}, 3")
    E("s_cbranch_scc0 M_notab")
    for i in range(4): E(f"v_mov_b32 v{TB+i}, 0")
    for k in range(5):
        E(f"ds_write_b128 v{PA}, {vr(TB,4)} offset:{TZ + k*1024}")
    E(f"v_and_b32 v{TB+4}, 0x13, v{m}")
    E(f"v_and_b32 v{TB+5}, 4, v{m}")
    E(f"v_lshl_add_u32 v{TB+4}, v{TB+5}, 1, v{TB+4}")
    E(f"v_and_b32 v{TB+5}, 8, v{m}")
    E(f"v_lshrrev_b32 v{TB+5}, 1, v{TB+5}")
    E(f"v_add_u32 v{TB+4}, v{TB+4}, v{TB+5}")
    E(f"v_cmp_lt_u32 vcc, 31, v{L}")
    E(f"v_mul_u32_u24 v{TB+6}, 80, v{L}")
    E(f"v_mov_b32 v{TB+7}, 0x3f80")
    E(f"v_cndmask_b32 v{TB+4}, v{TB+4}, v{m}, vcc")
    E(f"v_cmp_eq_u32 vcc, 31, v{m}")
    E(f"v_lshl_add_u32 v{TB+6}, v{TB+4}, 1, v{TB+6}")
    E("s_nop 0")
    E(f"v_cndmask_b32 v{TB+7}, v{TB+7}, v{TB}, vcc")
    E(f"ds_write_b16 v{TB+6}, v{TB+7} offset:{TZ}")
    E.label("M_notab")
    E(f"v_lshrrev_b32 v{VB}, 3, v{L}")
    E(f"s_lshl_b32 s10, s{S_WAVE}, 5")
    E(f"v_add_u32 v{VB}, s10, v{VB}")
    E(f"v_mul_u32_u24 v{VB}, {CH}, v{VB}")
    E(f"v_mov_b32 v{E8}, 8")
    E("s_waitcnt lgkmcnt(0)")
    for s_ in range(4): rd_x(E, s_, 0)
    for i in range(8):
        E.ds(f"ds_read_b128 {vr(WB+4*i,4)}, v{WA} offset:{i*1024}", rng(WB + 4 * i, 4))
    for s_ in range(4):
        for f in range(2):
            E.need(rng(wb(s_, f), 4))
            E(mfma(zb(f), X + 4 * s_, wb(s_, f), None if s_ == 0 else zb(f)))
            i = s_ * 2 + f
            E.ds(f"ds_read_b128 {vr(WV+4*i,4)}, v{WA} offset:{(26+i)*1024}", rng(WV + 4 * i, 4))
    for s_ in range(4):
        for f in range(2):
            E.need(rng(wv(s_, f), 4))
            E(mfma(ACC + 16 * f, X + 4 * s_, wv(s_, f), None if s_ == 0 else ACC + 16 * f))
            i = s_ * 2 + f
            E.ds(f"ds_read_b128 {vr(WB+4*i,4)}, v{WA} offset:{(8+i)*1024}", rng(WB + 4 * i, 4))
    for i in range(2):
        E.ds(f"ds_read_b128 {vr(WC+4*i,4)}, v{WA} offset:{(16+i)*1024}", rng(WC + 4 * i, 4))
    E(f"s_mov_b32 s10, {NLOG2E}")
    for i in range(32):
        E(f"v_mul_f32 v{Z0+i}, s10, v{Z0+i}")
    for f in range(2):
        for s_ in range(2):
            for jj in range(4):
                E(f"v_cvt_pk_bf16_f32 v{xa(s_,f)+jj}, v{zb(f)+8*s_+2*jj}, v{zb(f)+8*s_+2*jj+1}")
    E.drain()
    for i in range(8):
        E.ds(f"ds_read_b128 {vr(WV+4*i,4)}, v{WA} offset:{(18+i)*1024}", rng(WV + 4 * i, 4))
    E.drain()
    if pp == 2:
        for u in range(4): poll_ld(u)
    stamp(E, opt, 4, 1); stamp(E, opt, 3, 4)
    R = EE
    MK = [48, 50, 52, 54, 56, 58, 60, 62, 68, 70, 8, 74]
    VBU, SEL, DX = X, X + 4, X + 8
    for u in range(4): E(f"v_add_u32 v{VBU+u}, {u*8*CH}, v{VB}")
    for j in range(3): E(f"v_mov_b32 v{SEL+j}, {0x0c040100 + (j << 16)}")
    if pfc:
        E(f"s_waitcnt vmcnt({pfc})")
        E("s_branch M_poll1")
    E.label("M_poll")
    E("s_waitcnt vmcnt(0)")
    E.label("M_poll1")
    stamp(E, opt, 4, 4)
    for k in MK: E(f"s_mov_b64 s[{k}:{k+1}], 0")
    for u in range(4):
        sm = 40 + 2 * u; mk = MK[3*u:3*u+3]; A = H + 4 * u
        E(f"s_mov_b64 exec, s[{sm}:{sm+1}]")
        E(f"s_cbranch_execz M_pu{u}")
        E(f"v_xor_b32 v{DX}, s{S_TAG}, v{A+3}")
        E(f"v_cmp_ne_u16 s[{mk[2]}:{mk[2]+1}], -1, v{A+2}")
        E(f"v_and_b32 v{DX+1}, s{S_TM}, v{DX}")
        E(f"v_cmp_eq_u32 vcc, 0, v{DX+1}")
        for j in range(3): E(f"v_lshrrev_b32 v{Z1+3*u+j}, 26, v{A+j}")
        E(f"s_and_b64 s[{mk[2]}:{mk[2]+1}], s[{mk[2]}:{mk[2]+1}], vcc")
        E(f"s_and_b32 s{mk[0]}, s{mk[2]}, 0x7f7f7f7f")
        E(f"s_and_b32 s{mk[0]+1}, s{mk[2]+1}, 0x7f7f7f7f")
        E(f"s_add_u32 s10, s{mk[0]}, 0x01010101")
        E(f"s_add_u32 s11, s{mk[0]+1}, 0x01010101")
        E(f"s_xor_b64 s[10:11], s[10:11], s[{mk[0]}:{mk[0]+1}]")
        E(f"s_and_b64 s[10:11], s[10:11], exec")
        E(f"s_and_b64 s[{mk[2]}:{mk[2]+1}], s[{mk[2]}:{mk[2]+1}], s[10:11]")
        E(f"s_andn2_b64 vcc, s[10:11], vcc")
        E(f"s_cselect_b64 s[{mk[2]}:{mk[2]+1}], 0, s[{mk[2]}:{mk[2]+1}]")
        E(f"s_mov_b64 s[{mk[0]}:{mk[0]+1}], 0")
        E(f"s_cbranch_scc1 M_pl{u}")
        E(f"s_mov_b64 exec, s[10:11]")
        E(f"v_cmp_ne_u16 s[{mk[0]}:{mk[0]+1}], -1, v{A}")
        E(f"v_cmp_ne_u16 s[{mk[1]}:{mk[1]+1}], -1, v{A+1}")
        for j in range(3): E(f"v_and_b32 v{Z1+3*u+j}, 0x3c, v{Z1+3*u+j}")
        E(f"s_lshr_b64 s[{sm}:{sm+1}], s[{mk[2]}:{mk[2]+1}], 7")
        for j in range(3):
            i = 3 * u + j
            E(f"s_mov_b64 exec, s[{mk[j]}:{mk[j]+1}]")
            E(f"ds_add_rtn_u32 v{Z1+i}, v{Z1+i}, v{E8} offset:{CNT}")
            E(f"v_bfe_u32 v{R+2*i+1}, v{A+j}, 16, 12")
            E(f"v_bfe_i32 v{Z0+i}, v{A+j}, 28, 1")
            E(f"v_perm_b32 v{R+2*i}, v{DX}, v{A+j}, v{SEL+j}")
            E(f"v_add_u32 v{R+2*i+1}, v{R+2*i+1}, v{VBU+u}")
        E(f"s_and_b32 s{sm}, s{sm}, 0x01010101")
        E(f"s_and_b32 s{sm+1}, s{sm+1}, 0x01010101")
        E(f"s_mul_i32 s{sm}, s{sm}, 0xff")
        E(f"s_mul_i32 s{sm+1}, s{sm+1}, 0xff")
        E(f"s_add_u32 s{64+u}, s{64+u}, {SL_LINE}")
        E(f"s_mov_b64 exec, s[{sm}:{sm+1}]")
        E(f"s_cbranch_execz M_pu{u}")
        E(f"s_cmp_lt_u32 s{64+u}, {WS_USE}")
        E(f"s_cbranch_scc0 M_giveup")
        E.label(f"M_pl{u}")
        poll_ld(u)
        E.label(f"M_pu{u}")
    E("s_waitcnt lgkmcnt(0)")
    for j in range(12):
        E(f"s_mov_b64 exec, s[{MK[j]}:{MK[j]+1}]")
        E(f"v_xor_b32 v{Z1+j}, v{Z1+j}, v{Z0+j}")
        E(f"v_max_i32 v{Z1+j}, s{S_T1}, v{Z1+j}")
        E(f"ds_write_b64 v{Z1+j}, {vr(R+2*j,2)}")
    E("s_or_b64 s[10:11], s[40:41], s[42:43]")
    E("s_or_b64 s[48:49], s[44:45], s[46:47]")
    E(f"s_add_u32 s{S_MAX}, s{S_MAX}, 1")
    E("s_or_b64 s[10:11], s[10:11], s[48:49]")
    E("s_cbranch_scc0 M_routed")
    E(f"s_cmp_lt_u32 s{S_MAX}, {opt.get('tmo', 4000)}")
    E("s_cbranch_scc1 M_poll")
    E.label("M_giveup")
    E("s_mov_b64 exec, -1")
    E(f"v_mov_b32 v{Z0}, 0")
    E(f"ds_write_b32 v{Z0}, v{E8} offset:{FLG}")
    E("s_waitcnt vmcnt(0)")
    E.label("M_routed")
    E("s_mov_b64 exec, -1")
    E(f"s_add_u32 s10, s{S_WAVE}, 254")
    E(f"v_mov_b32 v{VT}, s10")
    E(f"s_mov_b32 s{S_T0}, s{S_TAG}")
    E("s_waitcnt lgkmcnt(0)")
    E("s_barrier")
    stamp(E, opt, 5, 1); stamp(E, opt, 0, 2); stamp(E, opt, 5, 4)
    E.label("M_entry")
    E(f"v_and_b32 v{Z0}, 7, v{TID}")
    E(f"v_lshlrev_b32 v{Z0+1}, 3, v{Z0}")
    E(f"ds_read_b64 {vr(Z0+2,2)}, v{Z0+1} offset:{CNT}")
    E(f"ds_read_b32 v{Z0+9}, v{Z0+1} offset:{FLG}")
    E(f"v_and_b32 v{L}, 63, v{TID}")
    E(f"v_and_b32 v{LPX}, 0x38, v{L}")
    E(f"v_lshrrev_b32 v{LPE}, 1, v{L}")
    E(f"v_lshlrev_b32 v{LPE}, 3, v{LPE}")
    E(f"v_and_b32 v{LPZ}, 31, v{L}")
    E(f"v_lshlrev_b32 v{LPZ}, 3, v{LPZ}")
    E(f"v_and_b32 v{LPS}, 12, v{L}")
    E(f"v_lshlrev_b32 v{LPS}, 1, v{LPS}")
    E(f"v_and_b32 v{Z0+4}, 32, v{L}")
    E(f"v_mov_b32 v{Z0+6}, {0xFFFF | (31 << 16)}")
    E(f"s_mov_b32 s{S_80}, 80")
    E(f"v_mov_b32 v{Z0+7}, 0x100000")
    E(f"v_lshlrev_b32 v{Z0+5}, 3, v{L}")
    E(f"v_mov_b32 v{Z0+8}, {LIST - 1024}")
    E(f"s_mov_b32 s11, {K2_LDS - 1024}")
    E("s_waitcnt lgkmcnt(0)")
    E(f"v_sub_u32 v{Z0+3}, 7, v{Z0+3}")
    E(f"v_mov_b32_dpp v{Z0+8}, v{Z0+2} row_shr:1 row_mask:0xf bank_mask:0xf")
    E(f"v_cmp_lt_i32 s[{S_MASK}:{S_MASK+1}], s11, v{Z0+2}")
    E(f"v_readlane_b32 s10, v{Z0+2}, s{S_G}")
    E(f"v_add_u32 v{Z0+8}, 1024, v{Z0+8}")
    E(f"v_readlane_b32 s{S_LB}, v{Z0+3}, s{S_G}")
    E(f"v_cmp_lt_i32 vcc, v{Z0+3}, v{Z0+8}")
    E(f"v_readfirstlane_b32 s{S_MASK+1}, v{Z0+9}")
    E(f"s_or_b32 s11, vcc_lo, s{S_MASK}")
    E(f"s_or_b32 s11, s11, s{S_MASK+1}")
    E(f"s_and_b32 s11, s11, 0xff")
    E("s_cbranch_scc1 M_slowinit")
    E(f"v_add_u32 v{LPX}, s{S_LB}, v{LPX}")
    E(f"v_add3_u32 v{LPE}, v{LPE}, s{S_LB}, 4")
    E(f"s_sub_u32 s{S_NT}, s10, s{S_LB}")
    E(f"v_add_u32 v{Z0+5}, s10, v{Z0+5}")
    E(f"ds_write_b64 v{Z0+5}, {vr(Z0+6,2)}")
    E(f"ds_write_b64 v{Z0+5}, {vr(Z0+6,2)} offset:512")
    E(f"s_add_u32 s10, s{S_LB}, 2")
    E(f"v_add_u32 v{LPZ}, s10, v{LPZ}")
    E(f"v_add3_u32 v{LPS}, v{LPS}, v{Z0+4}, s10")
    E(f"s_add_u32 s{S_NT}, s{S_NT}, 255")
    E(f"s_lshr_b32 s{S_NT}, s{S_NT}, 8")
    E("s_waitcnt lgkmcnt(0)")
    lead = opt.get("lead", 1)
    def fill(t):
        rd_list_dma(E, t)
        E.need([EPR])
        E(f"v_and_b32 v{EPR}, {EMASK}, v{EPR}")
        for g in dma_tile(E, t):
            reg = int(re.search(r"v\[(\d+):", g[2]).group(1))
            E(g[0]); E.need([reg]); E(g[1]); E(g[2])
    if opt.get("leadprio", 3):
        E(f"s_lshr_b32 s10, s{S_WAVE}, 2")
        E(f"s_cmp_eq_u32 s10, {lead}")
        E("s_cbranch_scc0 M_fill0")
        E(f"s_setprio {opt.get('leadprio', 3)}")
        E.label("M_fill0")
    fill(0)
    stamp(E, opt, 1, 2)
    if opt.get("b3", 1): E("s_barrier")
    stamp(E, opt, 2, 2)
    fill(1)
    stamp(E, opt, 3, 2)
    E(f"s_cmp_eq_u32 s{S_NT}, 0")
    E(f"s_cbranch_scc1 M_exit")
    rd_dz(E, 0)
    for w in range(4): rd_ds(E, 0, w)
    rd_list_dma(E, 2)
    for i in range(16): E(f"v_mov_b32 v{H+i}, 0")
    for i in range(8): E(f"v_mov_b32 v{S+i}, 0")
    E.need([DZ] + rng(DS, 4))
    E(f"v_mad_u32_u24 v{DZ}, v{DZ}, s{S_80}, v{CZ}")
    for w in range(4): E(f"v_mad_u32_u24 v{DS+w}, v{DS+w}, s{S_80}, v{CS}")
    rd_oh(E, 0); rd_oh(E, 1)
    E.need([EPR])
    E(f"v_and_b32 v{EPR}, {EMASK}, v{EPR}")
    E.need(rng(OH, 4))
    E(mfma(Z0, OH, xa(0, 0), None))
    E.need(rng(OH + 4, 4))
    E(mfma(Z0, OH + 4, xa(1, 0), Z0))
    E("s_waitcnt vmcnt(5)")
    stamp(E, opt, 4, 2)
    rd_e(E, 0)
    for s_ in range(4): rd_x(E, s_, 0)
    E.need(rng(EE, 4))
    E(mfma(Z0, EE, wc(0), Z0))
    for s_ in range(4):
        E.need(rng(X + 4 * s_, 4))
        E(mfma(Z0, X + 4 * s_, wb(s_, 0), Z0))
    assert not E.pend
    for g in dma_tile(E, 0):
        for i in g: E(i)
    stamp(E, opt, 5, 2)
    if opt.get("prof"):
        E(f"s_mov_b32 s74, s{S_NT}")
        if opt.get("prof") in (1, 4): E(f"s_mov_b32 s74, s{S_MAX}")
        E("s_memtime s[72:73]")
        E("s_waitcnt lgkmcnt(0)")
    E.label("M_loop")
    tile_body(E, 0, opt)
    E(f"s_sub_u32 s{S_NT}, s{S_NT}, 1")
    E(f"s_cmp_eq_u32 s{S_NT}, 0")
    E("s_cbranch_scc1 M_drain")
    tile_body(E, 1, opt)
    E(f"s_sub_u32 s{S_NT}, s{S_NT}, 1")
    E(f"s_cmp_lg_u32 s{S_NT}, 0")
    E("s_cbranch_scc1 M_loop")
    E.label("M_drain")
    for i in range(8): E(f"v_cvt_pk_bf16_f32 v{MSG+i}, v{H+2*i}, v{H+2*i+1}")
    E("s_nop 1")
    E(mfma(ACC + 16, S, MSG, ACC + 16))
    E(mfma(ACC + 16, S + 4, MSG + 4, ACC + 16))
    E.label("M_exit")
    E(f"s_cmp_eq_u32 s{S_SLOW}, 0")
    E("s_cbranch_scc1 M_epi")
    E("s_waitcnt vmcnt(0) lgkmcnt(0)")
    E(f"s_add_u32 s{S_J}, s{S_J}, 512")
    E(f"s_cmp_ge_u32 s{S_J}, {N_EDGES}")
    E("s_cbranch_scc1 M_epi")
    E.label("M_batch")
    E("s_setprio 0")
    E("s_load_dwordx4 s[44:47], s[0:1], 16")
    E("s_nop 7")
    E("s_nop 7")
    E("s_barrier")
    reset_cnt(0, Z0 + 8)
    E(f"v_add_u32 v{H+1}, s{S_J}, v{TID}")
    E(f"v_lshlrev_b32 v{H+4}, 2, v{H+1}")
    E("s_waitcnt lgkmcnt(0)")
    srd(E, 60, 46, 47, N_EDGES * 4)
    srd(E, 64, 44, 45, N_EDGES * 4)
    E(f"buffer_load_dword v{H+2}, v{H+4}, s[60:63], 0 offen")
    E(f"buffer_load_dword v{H}, v{H+4}, s[64:67], 0 offen")
    E("s_mov_b32 s46, 85599")
    E(f"s_mov_b32 s48, 0")
    E(f"s_mov_b32 s49, {1 << 29}")
    E(f"s_mov_b32 s50, {N_EDGES}")
    E(f"v_mov_b32 v{H+6}, -49")
    E(f"v_mov_b32 v{E8}, 8")
    E(f"v_cmp_gt_u32 s[40:41], s50, v{H+1}")
    E("s_waitcnt vmcnt(0)")
    rec_calc(E, opt, [(H + 2, H, H + 1, H + 3, H + 5)], 46, 48, 49, H + 6, None, False)
    E(f"v_lshl_or_b32 v{H}, v{H+2}, 16, v{H}")
    E(f"v_lshrrev_b32 v{H+3}, 2, v{H+3}")
    E(f"v_cmp_eq_u32 vcc, s3, v{H+3}")
    E("s_barrier")
    E("s_and_b64 exec, vcc, s[40:41]")
    E(f"v_lshrrev_b32 v{Z0}, 26, v{H+1}")
    E(f"ds_add_rtn_u32 v{Z1}, v{Z0}, v{E8} offset:{CNT}")
    E("s_waitcnt lgkmcnt(0)")
    E(f"ds_write_b64 v{Z1}, {vr(H,2)}")
    E("s_mov_b64 exec, -1")
    E("s_waitcnt lgkmcnt(0)")
    E("s_barrier")
    E("s_branch M_entry")
    E.label("M_slowinit")
    E(f"s_mov_b32 s{S_SLOW}, 1")
    E(f"s_mov_b32 s{S_J}, 0")
    E(f"v_mov_b32 v{VT}, 1")
    E(f"v_mov_b32 v{Z0}, 0")
    E(f"s_cmp_eq_u32 s{S_WAVE}, 1")
    E("s_cbranch_scc0 M_batch")
    E("s_mov_b64 exec, 1")
    E(f"buffer_atomic_add v{VT}, v{Z0}, s[4:7], 0 offen sc0 sc1")
    E("s_mov_b64 exec, -1")
    E("s_branch M_batch")
    E.label("M_epi")
    stamp(E, opt, 6)
    if opt.get("prof"):
        E("s_memtime s[92:93]")
        E("s_waitcnt lgkmcnt(0)")
        E("s_sub_u32 s92, s92, s72")
        E("s_lshl_b32 s92, s92, 8")
        E("s_or_b32 s74, s74, s92")
    E(f"s_mov_b32 s10, {NLOG2E}")
    E(f"v_and_b32 v{TMP}, 31, v{TID}")
    E(f"v_lshlrev_b32 v{TMP}, 2, v{TMP}")
    E(f"v_and_b32 v{TMP+1}, 32, v{TID}")
    E(f"v_lshl_add_u32 v{TMP}, v{TMP+1}, 4, v{TMP}")
    E(f"v_readfirstlane_b32 s11, v{VT}")
    E(f"v_mov_b32 v{TMP+2}, 4")
    E(f"v_mov_b32 v{TMP+3}, s{S_T0}")
    E("s_cmp_eq_u32 s11, 255")
    E("s_cbranch_scc0 M_noep")
    E(f"buffer_store_dword v{TMP+3}, v{TMP+2}, s[{S_WS}:{S_WS+3}], 0 offen")
    E.label("M_noep")
    E(f"s_lshl_b32 s11, s{S_NODE}, 7")
    E("s_nop 7")
    regs = [ACC + r for r in range(13)] + [ACC + 16 + r for r in range(13)]
    tmp = {a: Z0 + (a - ACC) for a in regs}
    for a in regs: E(f"v_mul_f32 v{tmp[a]}, s10, v{a}")
    for a in regs: E(f"v_exp_f32 v{tmp[a]}, v{tmp[a]}")
    for a in regs: E(f"v_add_f32 v{tmp[a]}, 1.0, v{tmp[a]}")
    for a in regs: E(f"v_rcp_f32 v{tmp[a]}, v{tmp[a]}")
    for a in regs: E(f"v_mul_f32 v{a}, v{a}, v{tmp[a]}")
    of = opt.get("out_flags", "sc1")
    for r in range(13):
        E(f"v_cvt_pk_bf16_f32 v{H+r}, v{ACC+r}, v{ACC+16+r}")
        if r < 12:
            E(f"buffer_store_dword v{H+r}, v{TMP}, s[{S_OUT}:{S_OUT+3}], s11 offen offset:{((r&3)+8*(r>>2))*128} {of}")
    E(f"s_cmp_lt_u32 s{S_WAVE}, 4")
    E("s_cbranch_scc0 M_end2")
    E("s_mov_b32 exec_hi, 0")
    E(f"buffer_store_dword v{H+12}, v{TMP}, s[{S_OUT}:{S_OUT+3}], s11 offen offset:{24*128} {of}")
    E.label("M_end2")
    prof_out(E, opt, S_WS, S_WAVE, 0x100000, 8, 74)
    E.label("M_end")
    E("s_endpgm")

def desc(name, vgpr, sgpr=102):
    acc = (vgpr + 3) // 4 * 4
    return [".p2align 6", f".amdhsa_kernel {name}", f"  .amdhsa_next_free_vgpr {vgpr}",
            f"  .amdhsa_next_free_sgpr {sgpr}", f"  .amdhsa_accum_offset {acc}",
            "  .amdhsa_group_segment_fixed_size 0", "  .amdhsa_kernarg_size 80",
            "  .amdhsa_user_sgpr_count 2", "  .amdhsa_user_sgpr_kernarg_segment_ptr 1",
            "  .amdhsa_system_sgpr_workgroup_id_x 1", ".end_amdhsa_kernel"]

def generate(opt):
    global EFLAGS, EMASK
    EMASK = opt.get("emask", 0x1fffff)
    EFLAGS = opt.get("e_flags", "")
    ref = open(f"cdna_kernels/{NAME}.s.ref").read().split("\n")
    hdr = [l for l in ref if l.startswith(";") and "@launch" not in l and "Override" not in l and "Harness parses" not in l]
    out = hdr[:]
    if opt.get("aslist"):
        out.append(f"; @launch kernel={NAME}_kernel grid=(256,1,1) block=(512,1,1) lds={K2_LDS}")
    else:
        out.append(f"; @launch grid=(256,1,1) block=(512,1,1) lds={K2_LDS}")
    out.append('.amdgcn_target "amdgcn-amd-amdhsa--gfx950"')
    out.append(".text")
    nm = NAME + "_kernel"
    out += [f".globl {nm}", ".p2align 8", f".type {nm},@function"]
    E = Em(); gen_k(E, opt); out += E.L
    out.append('.section .rodata,"a"')
    out += desc(nm, 256 if opt.get("pf") else K2_VGPR)
    return "\n".join(out) + "\n"

if __name__ == "__main__":
    opt = {}
    path = f"cdna_kernels/{NAME}.s"
    for a in sys.argv[1:]:
        k, v = a.split("=", 1)
        if k == "out": path = v
        else:
            try: v = eval(v)
            except Exception: pass
            opt[k] = v
    open(path, "w").write(generate(opt))
    print("wrote", path)
```

```python
import sys, re

NAME = "gather_scatter__edge_featured_mpnn_egc__graph"
N_NODES = 50000
N_EDGES = 800000
CH = 3128
SL_OFF = 0x100000
SL_LINE = 0x800000
NLINE = 2
WS_USE = SL_OFF + NLINE * SL_LINE
NLOG2E = 0xBFB8AA3B

class Em:
    def __init__(self):
        self.L = []
        self.pend = []
    def __call__(self, s):
        self.L.append("    " + s)
    def label(self, s):
        self.L.append(s + ":")
    def c(self, s):
        self.L.append("    ; " + s)
    def ds(self, s, dst=()):
        self(s)
        self.pend.append(set(dst))
        assert len(self.pend) <= 15, "too many outstanding LDS ops"
    def need(self, regs):
        regs = set(regs)
        last = -1
        for i, d in enumerate(self.pend):
            if d & regs:
                last = i
        if last >= 0:
            n = len(self.pend) - 1 - last
            self(f"s_waitcnt lgkmcnt({n})")
            self.pend = self.pend[last + 1:]
    def drain(self):
        self("s_waitcnt lgkmcnt(0)")
        self.pend = []

PROF_OFF = 0x4000000
def stamp(E, opt, i, only=None):
    if opt.get("prof") and (only is None or opt.get("prof") == only):
        E(f"s_memrealtime s[{76+2*i}:{77+2*i}]")
        E(f"s_memtime s[94:95]")
        E("s_waitcnt lgkmcnt(0)")
        E(f"s_mov_b32 s{77+2*i}, s94")
        E.pend = []
def tstamp(E, opt):
    if opt.get("prof") == 7:
        E("s_memrealtime s[96:97]")
        E("s_memtime s[98:99]")
        E("s_waitcnt lgkmcnt(0)")
        E("s_and_b32 s96, s96, 0xffff")
        E("s_lshl_b32 s98, s98, 14")
        E("s_and_b32 s98, s98, 0xffff0000")
        E("s_or_b32 s96, s96, s98")
        E("s_min_u32 s86, s86, 15")
        E("s_mov_b32 m0, s86")
        E("v_writelane_b32 v250, s96, m0")
        E("s_add_u32 s86, s86, 1")
def prof_out(E, opt, wslo, wavereg, base, n, extra=None):
    if not opt.get("prof"): return
    if opt.get("prof") == 7:
        E("s_mov_b64 exec, 0xffff")
        E(f"s_mov_b32 s96, s{wslo}")
        E(f"s_mov_b32 s97, s{wslo+1}")
        E(f"s_mov_b32 s98, {PROF_OFF + 0x200000}")
        E("s_mov_b32 s99, 0x20000")
        E("s_lshl_b32 s100, s2, 3")
        E(f"s_add_u32 s100, s100, s{wavereg}")
        E("s_lshl_b32 s100, s100, 6")
        E(f"s_add_u32 s100, s100, {PROF_OFF + base}")
        E(f"v_and_b32 v1, 15, v{TID}")
        E("v_lshlrev_b32 v1, 2, v1")
        E("buffer_store_dword v250, v1, s[96:99], s100 offen")
        return
    E("s_waitcnt vmcnt(0)")
    stamp(E, opt, n - 1)
    E("s_mov_b64 exec, 1")
    if opt.get("leak") is not None:
        i, j, lb, lm = opt["leak"]
        E(f"s_cmp_eq_u32 s{wavereg}, 4")
        E("s_cbranch_scc0 M_end")
        if i >= 100:
            E(f"s_sub_u32 s96, s{77+2*(i-100)}, s{77+2*j}")
            E("s_lshr_b32 s96, s96, 4")
        else:
            E(f"s_sub_u32 s96, s{76+2*i}, s{76+2*j}")
        E("s_min_u32 s96, s96, 10000")
        E(f"s_mul_i32 s96, s96, {lm}")
        E(f"s_add_u32 s96, s96, {lb}")
        E.label("M_leak")
        E("s_sleep 2")
        E("s_memrealtime s[98:99]")
        E("s_waitcnt lgkmcnt(0)")
        E("s_sub_u32 s98, s98, s76")
        E("s_cmp_lt_u32 s98, s96")
        E("s_cbranch_scc1 M_leak")
        return
    if opt.get("dbgout"):
        E(f"s_cmp_eq_u32 s{wavereg}, 4")
        E("s_cbranch_scc0 M_end")
        E("v_mov_b32 v1, 0")
        for q, i in enumerate((5, 6, 7)):
            E(f"v_mov_b32 v2, s{76+2*i}")
            E(f"buffer_atomic_umax v2, v1, s[4:7], 0 offen offset:{4+4*q} sc1")
        for q, i in enumerate((0,)):
            E(f"s_not_b32 s96, s{76+2*i}")
            E(f"v_mov_b32 v2, s96")
            E(f"buffer_atomic_umax v2, v1, s[4:7], 0 offen offset:{16+4*q} sc1")
        E("s_cmp_eq_u32 s2, 77")
        E("s_cbranch_scc0 M_end")
        for q, r in enumerate((76, 78, 80, 82, 84, 86, 88, 90, 87, 89, extra)):
            E(f"v_mov_b32 v2, s{r}")
            E(f"buffer_store_dword v2, v1, s[4:7], 0 offen offset:{20+4*q} sc1")
        return
    E(f"s_mov_b32 s96, s{wslo}")
    E(f"s_mov_b32 s97, s{wslo+1}")
    E(f"s_mov_b32 s98, {PROF_OFF + 0x200000}")
    E("s_mov_b32 s99, 0x20000")
    E("s_lshl_b32 s100, s2, 3")
    E(f"s_add_u32 s100, s100, s{wavereg}")
    E("s_lshl_b32 s100, s100, 6")
    E(f"s_add_u32 s100, s100, {PROF_OFF + base}")
    E("v_mov_b32 v1, 0")
    for i in range(n):
        E(f"v_mov_b32 v2, s{76+2*i}")
        E(f"buffer_store_dword v2, v1, s[96:99], s100 offen offset:{4*i}")
        if i < 7:
            E(f"v_mov_b32 v2, s{77+2*i}")
            E(f"buffer_store_dword v2, v1, s[96:99], s100 offen offset:{32+4*i}")
    if extra is not None:
        E(f"v_mov_b32 v2, s{extra}")
        E(f"buffer_store_dword v2, v1, s[96:99], s100 offen offset:60")

def vr(a, n=1):
    return f"v{a}" if n == 1 else f"v[{a}:{a+n-1}]"
def sr(a, n=1):
    return f"s{a}" if n == 1 else f"s[{a}:{a+n-1}]"
def rng(a, n):
    return list(range(a, a + n))

def srd(E, d, lo, hi, nrec, stride=0):
    E(f"s_mov_b32 s{d}, s{lo}")
    if stride:
        E(f"s_or_b32 s{d+1}, s{hi}, {stride << 16}")
    else:
        E(f"s_mov_b32 s{d+1}, s{hi}")
    E(f"s_mov_b32 s{d+2}, {nrec}")
    E(f"s_mov_b32 s{d+3}, 0x20000")

TZ = 0
TS = 2560
CNT = 5120
FLG = 5184
WST = 5376
ER = 40192
XR = 56576
LIST = 122112
STG = ER
SSTR = 400
INV0 = 0xFFFF
LCAP = 640
K2_LDS = 163840
CEN0 = 395

WB = 0
WV = 32
WC = 64
XA = 72
ACC = 88
Z0 = 120
Z1 = 136
H = 152
X = 168
EE = 184
OH = 188
S = 196
MSG = 204
XP = 212
EPR = 220
DZ = 222
CZ = 223
DS = 224
CS = 228
XAD = 229
EAD = 233
LPX = 234
LPE = 235
LPZ = 236
LPS = 237
VT = 238
TID = 239
TMP = 240
K2_VGPR = 248

def wb(s, f): return WB + (s * 2 + f) * 4
def wv(s, f): return WV + (s * 2 + f) * 4
def wc(f): return WC + f * 4
def xa(s, f): return XA + (s * 2 + f) * 4
def zb(f): return Z1 if f else Z0

def mfma(d, a, b, c):
    cs = "0" if c is None else vr(c, 16)
    return f"v_mfma_f32_32x32x16_bf16 {vr(d,16)}, {vr(a,4)}, {vr(b,4)}, {cs}"

S_X = 12
S_EP = 16
S_WS = 20
S_OUT = 24
S_WAVE = 28
S_G = 29
S_NT = 30
S_XR = 31
S_ER = 32
S_SLOW = 33
S_J = 34
S_MAX = 35
S_NODE = 36
S_LB = 37
S_T0 = 38
S_T1 = 39
S_MASK = 40
S_80 = 75
KINC = 87382
TMASK = 0xFFE0E0E0

EFLAGS = ""
EMASK = 0x1fffff
def dma_tile(E, slot, spacer=None):
    out = []
    out.append([f"s_add_u32 m0, s{S_ER}, {slot*1024}", "s_nop 0",
                f"buffer_load_dwordx4 {vr(EPR,2)}, s[{S_EP}:{S_EP+3}], 0 idxen offen {EFLAGS} lds"])
    for i in range(4):
        out.append([f"s_add_u32 m0, s{S_XR}, {slot*4096 + i*1024}", "s_nop 0",
                    f"buffer_load_dwordx4 {vr(XP+2*i,2)}, s[{S_X}:{S_X+3}], 0 idxen offen lds"])
    return out

def rd_list_dma(E, trel):
    E.ds(f"ds_read_b32 v{EPR}, v{LPE} offset:{trel*256}", [EPR])
    for i in range(4):
        E.ds(f"ds_read_u16 v{XP+2*i}, v{LPX} offset:{trel*256 + i*64}", [XP + 2 * i])

def rd_x(E, s, slot):
    E.ds(f"ds_read_b128 {vr(X+4*s,4)}, v{XAD+s} offset:{slot*4096}", rng(X + 4 * s, 4))
def rd_e(E, slot):
    E.ds(f"ds_read_b128 {vr(EE,4)}, v{EAD} offset:{slot*1024}", rng(EE, 4))
def rd_oh(E, s):
    E.ds(f"ds_read_b128 {vr(OH+4*s,4)}, v{DZ} offset:{s*32}", rng(OH + 4 * s, 4))
def rd_s(E, w):
    E.ds(f"ds_read_b64_tr_b16 {vr(S+2*w,2)}, v{DS+w}", rng(S + 2 * w, 2))
def rd_dz(E, trel):
    E.ds(f"ds_read_u16 v{DZ}, v{LPZ} offset:{trel*256}", [DZ])
def rd_ds(E, trel, w):
    E.ds(f"ds_read_u16 v{DS+w}, v{LPS} offset:{trel*256 + w*64}", [DS + w])

SH16 = {}
def acc0(E, opt):
    if opt.get("prof") == 6:
        E("s_memtime s[96:97]"); E.drain()
def acc1(E, opt, r):
    if opt.get("prof") == 6:
        E("s_memtime s[98:99]"); E.drain()
        E("s_sub_u32 s98, s98, s96")
        E(f"s_add_u32 s{r}, s{r}, s98")
def tile_body(E, par, opt):
    prio = opt.get("prio", True)
    def P(n):
        if prio: E(f"s_setprio {n}")
    def M(d, a, b, c):
        E.need(rng(a, 4)); E.need(rng(b, 4))
        if opt.get("halfx") and a in (X + 4, X + 12): return
        if opt.get("nox") and a in (X + 4, X + 8, X + 12): return
        if opt.get("nox") and a == X and d != H: return
        if opt.get("shape16"):
            st = SH16.setdefault(d, [0, 0])
            if c is None: st[0] = 0; st[1] = 2
            for q in range(2):
                blk = d + 4 * (2 * st[0] + q)
                bb = b if q == 0 else (b ^ 8 if b < 64 else b ^ 4)
                cs = "0" if st[1] > 0 else vr(blk, 4)
                E(f"v_mfma_f32_16x16x32_bf16 {vr(blk,4)}, {vr(a,4)}, {vr(bb,4)}, {cs}")
            st[0] ^= 1
            if st[1] > 0: st[1] -= 1
            return
        if opt.get("nooh") and a == OH + 4: return
        E(mfma(d, a, b, c))
    for f in (0, 1):
        z = zb(f); zn = zb(f ^ 1); fn = f ^ 1
        ex = [f"v_exp_f32 v{z+i}, v{z+i}" for i in range(16)]
        rc = [f"v_rcp_f32 v{z+i}, v{z+i}" for i in range(16)]
        if opt.get("notrans"):
            ex = [f"v_mov_b32 v{z+i}, v{z+i}" for i in range(16)]; rc = ex
        cv = [f"v_cvt_pk_bf16_f32 v{MSG+i}, v{H+2*i}, v{H+2*i+1}" for i in range(8)]
        E.c(f"---- slot f={f} par={par} T1")
        P(1)
        M(zn, EE, wc(fn), None)
        if f == 0:
            rd_dz(E, par + 1)
        else:
            for w in range(4): rd_ds(E, par + 1, w)
        for i in range(4): E(cv[i])
        E(ex[0])
        M(zn, OH, xa(0, fn), zn)
        for i in range(4, 8): E(cv[i])
        E(ex[1])
        k = 2
        dpos = opt.get("dpos", 4)
        nd = opt.get("nodma", 0)
        def dgrp(slot, fillers, k, lo=0, hi=5):
            g = dma_tile(E, slot)
            acc0(E, opt)
            for q in range(lo, hi):
                E(g[q][0])
                if k < 16: E(fillers[k]); k += 1
                else: E("s_nop 0")
                if not (nd == 1 or (nd == 2 and q == 0) or (nd == 3 and q > 0)): E(g[q][2])
            acc1(E, opt, 78)
            return k
        if f == 1:
            acc0(E, opt)
            E("s_waitcnt vmcnt(%d)" % ({0:5,1:5,2:4,3:1}[nd] if dpos < 2 else {2: 0, 3: 1, 4: 0, 5: 0, 6: 0}[dpos]))
            acc1(E, opt, 80)
        for s in range(4):
            M(H, X + 4 * s, wv(s, f), None if s == 0 else H)
            if f == 1: rd_x(E, s, par ^ 1)
            if f == 1 and dpos == 5 and s == 0:
                g = dma_tile(E, par)
                E(g[0][0]); E(ex[k]); k += 1; E(g[0][2])
                for i in range(2): E(ex[k]); k += 1
            elif f == 1 and dpos in (2, 3):
                g = dma_tile(E, par)
                if s == 0 and dpos == 2:
                    E(g[0][0]); E(ex[k]); k += 1; E(g[0][2])
                E(g[s+1][0]); E(ex[k]); k += 1; E(g[s+1][2])
                while k < 5 + 3 * s: E(ex[k]); k += 1
            else:
                for i in range(3): E(ex[k]); k += 1
        M(ACC + 16 * fn, S, MSG, ACC + 16 * fn)
        E(ex[k]); E(ex[k + 1])
        M(ACC + 16 * fn, S + 4, MSG + 4, ACC + 16 * fn)
        if f == 0:
            for w in range(4): rd_s(E, w)
        E.c("P1")
        P(0)
        if opt.get("pk", 0) & 1:
            for i in range(8): E(f"v_pk_add_f32 {vr(z+2*i,2)}, {vr(z+2*i,2)}, 1.0 op_sel_hi:[1,0]")
        else:
            for i in range(16): E(f"v_add_f32 v{z+i}, 1.0, v{z+i}")
        if f == 0:
            E.need([DZ])
            E(f"v_mad_u32_u24 v{DZ}, v{DZ}, s{S_80}, v{CZ}")
        elif dpos == 0:
            E.need([EPR])
            E(f"v_and_b32 v{EPR}, {EMASK}, v{EPR}")
        E.c("T2")
        P(1)
        M(zn, OH + 4, xa(1, fn), zn)
        if f == 0:
            acc0(E, opt)
            E("s_waitcnt vmcnt(%d)" % ({0:9,1:9,2:8,3:1}[nd] if dpos == 0 else 4))
            acc1(E, opt, 82)
            rd_e(E, par ^ 1); rd_oh(E, 0); rd_oh(E, 1)
            if dpos == 0: rd_list_dma(E, par + 3)
            if dpos >= 4: rd_list_dma(E, par + 2)
        k = 0
        for i in range(3): E(rc[k]); k += 1
        if f == 1 and dpos == 6:
            g = dma_tile(E, par)
            E(g[0][0]); E(rc[k]); k += 1; E(g[0][2])
        for s in range(4):
            M(zn, X + 4 * s, wb(s, fn), zn)
            if f == 1 and dpos in (5, 6):
                g = dma_tile(E, par)
                E(g[s+1][0]); E(rc[k]); k += 1; E(g[s+1][2])
                for i in range(2): E(rc[k]); k += 1
            elif s < 3:
                for i in range(3): E(rc[k]); k += 1
        if f == 1 and dpos == 4: k = dgrp(par, rc, k)
        if f == 1 and dpos == 0:
            assert not E.pend
            k = dgrp(par ^ 1, rc, k)
        if f == 0 and dpos == 1: k = dgrp(par, rc, k)
        if f == 0 and dpos == 3: k = dgrp(par, rc, k, 0, 1)
        if f == 1 and 0 < dpos < 4: rd_list_dma(E, par + 3)
        while k < 16: E(rc[k]); k += 1
        E.c("P2")
        P(0)
        if f == 1:
            for w in range(4): E(f"v_mad_u32_u24 v{DS+w}, v{DS+w}, s{S_80}, v{CS}")
            if par == 1:
                for r in (LPX, LPE, LPZ, LPS): E(f"v_add_u32 v{r}, 512, v{r}")
        if opt.get("pk", 0) & 2:
            for i in range(8): E(f"v_pk_mul_f32 {vr(H+2*i,2)}, {vr(H+2*i,2)}, {vr(z+2*i,2)}")
        else:
            for i in range(16): E(f"v_mul_f32 v{H+i}, v{H+i}, v{z+i}")
        if f == 0 and dpos >= 4:
            E.need([EPR])
            E(f"v_and_b32 v{EPR}, {EMASK}, v{EPR}")
        if f == 1 and 0 < dpos < 4:
            E.drain()
            E(f"v_and_b32 v{EPR}, {EMASK}, v{EPR}")
    assert not E.pend


def rec_calc(E, opt, items, s_mul, s_28, s_29, v_m49, mid=None, merge=True):
    for d, s, w, q, t in items: E(f"v_mul_u32_u24 v{q}, s{s_mul}, v{d}")
    for d, s, w, q, t in items: E(f"v_lshrrev_b32 v{q}, 22, v{q}")
    for it in items:
        d, s, w, q, t = it
        E(f"v_mad_i32_i24 v{d}, v{q}, v{v_m49}, v{d}")
        E(f"v_lshl_add_u32 v{w}, v{q}, 30, v{w}")
        if mid: mid(it)
    for d, s, w, q, t in items:
        E(f"v_subrev_u32 v{t}, 25, v{d}")
        E(f"v_and_or_b32 v{w}, v{t}, s{s_29}, v{w}")
        E(f"v_min_u32 v{d}, v{d}, v{t}")
        E(f"v_subrev_u32 v{t}, {opt.get('thr', 37000)}, v{s}")
        if opt.get("xmask"): E(f"v_and_b32 v{s}, {opt['xmask']}, v{s}")
        E(f"v_and_b32 v{t}, s{s_28}, v{t}")
        if merge: E(f"v_or3_b32 v{w}, v{w}, v{t}, v{s}")

def gen_k(E, opt):
    st = opt.get("st", "sc1")
    ld = opt.get("ld", "sc1")
    E.label(NAME + "_kernel")
    E("s_cmp_ge_u32 s2, 256")
    E("s_cbranch_scc1 M_end")
    stamp(E, opt, 0, 1); stamp(E, opt, 0, 3); stamp(E, opt, 0, 4); stamp(E, opt, 0, 5)
    E("s_load_dwordx16 s[40:55], s[0:1], 0")
    E("s_load_dwordx4 s[56:59], s[0:1], 64")
    E(f"v_mov_b32 v{TID}, v0")
    E(f"v_lshrrev_b32 v{TMP}, 6, v0")
    E("s_and_b32 s10, s2, 7")
    E("s_lshr_b32 s11, s2, 3")
    E(f"v_readfirstlane_b32 s{S_WAVE}, v{TMP}")
    E("s_lshl_b32 s3, s10, 5")
    E("s_add_u32 s3, s3, s11")
    E(f"s_and_b32 s{S_J}, s11, 0x18")
    E(f"s_add_u32 s{S_J}, s{S_J}, s10")
    E(f"s_lshl_b32 s{S_J}, s{S_J}, 3")
    E("s_and_b32 s11, s11, 7")
    E(f"s_add_u32 s{S_J}, s{S_J}, s11")
    E(f"s_mul_i32 s72, s{S_J}, {CH*4}")
    E(f"s_add_u32 s73, s72, {CH*4}")
    E(f"s_min_u32 s73, s73, {N_EDGES*4}")
    E("s_add_u32 s74, s72, 8192")
    E("s_add_u32 s75, s72, 12288")
    L = TMP + 1
    T16, T8, T4 = 130, 131, 132
    E(f"v_lshlrev_b32 v{T16}, 4, v0")
    E(f"v_lshlrev_b32 v{T8}, 3, v0")
    E(f"v_lshlrev_b32 v{T4}, 2, v0")
    E(f"v_and_b32 v{L}, 63, v0")
    m, h, h16 = TMP + 2, TMP + 3, TMP + 5
    t6, t7 = TMP + 6, TMP + 7
    E(f"v_and_b32 v{m}, 31, v0")
    E(f"v_lshrrev_b32 v{h}, 5, v{L}")
    E(f"v_lshlrev_b32 v{h16}, 4, v{h}")
    E(f"s_and_b32 s10, s{S_WAVE}, 3")
    E(f"s_lshr_b32 s11, s{S_WAVE}, 2")
    E(f"s_lshl_b32 s{S_G}, s10, 1")
    E(f"s_add_u32 s{S_G}, s{S_G}, s11")
    E(f"s_xor_b32 s{S_G}, s{S_G}, 1")
    E(f"s_lshl_b32 s{S_T0}, s3, 2")
    E(f"s_add_u32 s{S_T0}, s10, s{S_T0}")
    E(f"s_mul_i32 s{S_T0}, s{S_T0}, 49")
    E(f"s_mul_i32 s11, s11, 25")
    E(f"s_add_u32 s{S_NODE}, s{S_T0}, s11")
    E(f"s_lshl_b32 s{S_T0}, s{S_WAVE}, 11")
    E(f"s_lshl_b32 s{S_T1}, s10, 11")
    if opt.get("tlbw", 0) == 2:
        E(f"v_lshlrev_b32 v134, 19, v{m}")
        E(f"v_add_u32 v134, 4, v134")
    else:
        E(f"v_mov_b32 v134, 4")
    E("s_waitcnt lgkmcnt(0)")
    srd(E, 60, 46, 47, "s73")
    srd(E, 64, 44, 45, "s73")
    D1, S1 = 88, 96
    E(f"buffer_load_dwordx4 v[{D1}:{D1+3}], v{T16}, s[60:63], s72 offen")
    E(f"buffer_load_dwordx4 v[{S1}:{S1+3}], v{T16}, s[64:67], s72 offen")
    E(f"buffer_load_dwordx2 v[{D1+4}:{D1+5}], v{T8}, s[60:63], s74 offen")
    E(f"buffer_load_dwordx2 v[{S1+4}:{S1+5}], v{T8}, s[64:67], s74 offen")
    E(f"buffer_load_dword v{D1+6}, v{T4}, s[60:63], s75 offen")
    E(f"buffer_load_dword v{S1+6}, v{T4}, s[64:67], s75 offen")
    srd(E, S_WS, 58, 59, WS_USE)
    E(f"buffer_load_dword v{VT}, v134, s[{S_WS}:{S_WS+3}], 0 offen")
    stamp(E, opt, 1, 3)
    E(f"v_mov_b32 v136, {INV0}")
    E(f"v_mov_b32 v137, {INV0}")
    E(f"v_mov_b32 v138, {INV0}")
    E("v_mov_b32 v139, 0")
    E(f"v_lshrrev_b32 v134, 4, v0")
    E(f"v_mul_u32_u24 v134, {SSTR - 256}, v134")
    E(f"v_add_u32 v134, v134, v{T16}")
    E(f"v_add_u32 v135, {STG + 64*SSTR}, v134")
    E(f"ds_write_b32 v{T4}, v139 offset:{TZ}")
    for k in range(8):
        E(f"ds_write_b128 v{134 if k < 2 else 135}, v[136:139] offset:{STG + k*32*SSTR if k < 2 else (k-2)*32*SSTR}")
    srd(E, 4, 52, 53, 18432)
    E(f"s_cmp_lt_u32 s{S_WAVE}, 4")
    E("s_cselect_b32 s68, s50, s48")
    E("s_cselect_b32 s69, s51, s49")
    E("s_mov_b32 s70, 8192")
    E("s_mov_b32 s71, 0x20000")
    srd(E, S_X, 40, 41, N_NODES, 128)
    srd(E, S_EP, 42, 43, N_EDGES, 32)
    srd(E, S_OUT, 54, 55, N_NODES * 128)
    E(f"s_lshl_b32 s{S_XR}, s{S_WAVE}, 13")
    E(f"s_add_u32 s{S_XR}, s{S_XR}, {XR}")
    E(f"s_lshl_b32 s{S_ER}, s{S_WAVE}, 11")
    E(f"s_add_u32 s{S_ER}, s{S_ER}, {ER}")
    E(f"s_mov_b32 s{S_SLOW}, 0")
    PA = TMP + 4
    E(f"v_lshlrev_b32 v{PA}, 4, v{L}")
    E(f"v_and_b32 v{t6}, 7, v{L}")
    E(f"v_lshrrev_b32 v{t7}, 4, v{L}")
    E(f"v_xor_b32 v{t6}, v{t6}, v{t7}")
    E(f"v_lshlrev_b32 v{XP+1}, 4, v{t6}")
    E(f"v_xor_b32 v{XP+3}, 64, v{XP+1}")
    E(f"v_mov_b32 v{XP+5}, v{XP+1}")
    E(f"v_mov_b32 v{XP+7}, v{XP+3}")
    E(f"v_and_b32 v{t6}, 1, v{t6}")
    E(f"v_lshlrev_b32 v{EPR+1}, 4, v{t6}")
    E(f"v_lshrrev_b32 v{t7}, 3, v{L}")
    E(f"v_add_u32 v{XP}, s{S_NODE}, v{t7}")
    for i in range(1, 4): E(f"v_add_u32 v{XP+2*i}, {8*i}, v{XP}")
    for i in range(4): E(f"v_mov_b32 v{X+12+i}, 0")
    W1, Q, RT, TT = 104, 112, 120, 140
    E("s_sub_u32 s73, s73, s72")
    E(f"v_cmp_gt_u32 s[40:41], s73, v{T16}")
    E(f"v_add_u32 v{T8}, 8192, v{T8}")
    E(f"v_add_u32 v134, 12288, v{T4}")
    E(f"v_cmp_gt_u32 s[42:43], s73, v{T8}")
    E(f"v_cmp_gt_u32 s[44:45], s73, v134")
    E("s_mov_b32 s46, 85599")
    E(f"s_mov_b32 s48, {1 << 28}")
    E(f"s_mov_b32 s49, {1 << 29}")
    E(f"s_mov_b32 s50, {64 << 16}")
    E(f"s_mov_b32 s51, {STG}")
    E("v_mov_b32 v128, -49")
    E(f"v_mov_b32 v135, {KINC}")
    E(f"v_lshlrev_b32 v{W1}, 16, v{T4}")
    for j in range(1, 4): E(f"v_add_u32 v{W1+j}, {j << 16}, v{W1}")
    E(f"v_lshlrev_b32 v{W1+4}, 14, v{T8}")
    E(f"v_add_u32 v{W1+5}, {1 << 16}, v{W1+4}")
    E(f"v_lshlrev_b32 v{W1+6}, 14, v134")
    CA0, CA1, CC0, CG = 148, 149, 150, 147
    E(f"v_lshrrev_b32 v{CC0}, 3, v{TID}")
    E(f"v_and_b32 v{CA0}, 7, v{TID}")
    E(f"v_and_b32 v129, {8 - opt.get('gran', 2)}, v{TID}")
    E(f"v_lshlrev_b32 v129, 18, v129")
    E(f"v_lshlrev_b32 v{CA0}, 4, v{CA0}")
    lay = opt.get("lay", 0)
    KST = {0: 0x200000, 1: 8192, 2: 0x200000}[lay]
    if lay == 0: E(f"v_lshl_add_u32 v{CG}, v{CC0}, 15, v{CA0}")
    if lay == 1: E(f"v_mov_b32 v{CG}, v{T16}")
    if lay == 2:
        E(f"v_and_b32 v{CG}, 7, v{CC0}")
        E(f"v_lshl_add_u32 v{CG}, v{CG}, 10, v{CA0}")
    E(f"v_mul_u32_u24 v{CA1}, {SSTR}, v{CC0}")
    E(f"v_lshlrev_b32 v{CC0}, 2, v{CC0}")
    E(f"v_add3_u32 v{CA0}, v{CA0}, v{CA1}, s51")
    E(f"v_add_u32 v{CA1}, {128*SSTR}, v{CA0}")
    E("s_waitcnt lgkmcnt(0)")
    stamp(E, opt, 2, 3)
    E("s_barrier")
    def wdma(srdr, so, lo, lreg=None):
        for k in range(2):
            if lreg is None: E(f"s_mov_b32 m0, {WST + lo + k*1024}")
            else: E(f"s_add_u32 m0, s{lreg}, {WST + lo + k*1024}")
            if k: E(f"s_add_u32 s{so}, s{so}, 1024")
            else: E("s_nop 0")
            E(f"buffer_load_dwordx4 v{PA}, s[{srdr}:{srdr+3}], s{so} offen lds")
    def xgrp():
        for i in range(4):
            if i == 3 and opt.get("x25", 1): E("s_mov_b64 exec, 0xff")
            E(f"buffer_load_dwordx4 {vr(X+4*i,4)}, {vr(XP+2*i,2)}, s[{S_X}:{S_X+3}], 0 idxen offen")
        E("s_mov_b64 exec, -1")
    def ncl():
        E(f"s_lshl_b32 s10, s{S_WAVE}, 11")
        wdma(4, S_T0, 0, 10)
        wdma(68, S_T1, 18 * 1024, 10)
        if not xl: xgrp()
    xl = opt.get("xl", 0)
    NCN = 4 if xl else 8
    nc = opt.get("nc", 0)
    tw = opt.get("tlbw", 0)
    if tw == 1:
        E(f"s_lshl_b32 s10, s{S_WAVE}, 21")
        E(f"s_add_u32 s10, s10, {SL_OFF}")
        E(f"v_lshlrev_b32 v133, 19, v{L}")
        E("s_mov_b64 exec, 0xf")
        E(f"buffer_load_dword v133, v133, s[{S_WS}:{S_WS+3}], s10 offen")
        E("s_mov_b64 exec, -1")
    w0 = 1 + (tw == 1)
    pf0 = opt.get("pf0", 0)
    def pfx(i0, n):
        for i in range(i0, i0 + n):
            E(f"s_and_b32 s10, s2, 0xf8")
            E(f"s_add_u32 s10, s10, s{S_WAVE}")
            E(f"s_lshl_b32 s10, s10, 6")
            E(f"s_add_u32 s10, s10, {i*16384}")
            E(f"s_min_u32 s10, s10, {opt.get('pfmax', opt.get('thr', 37000)) - 64}")
            E(f"v_add_u32 v{250+i}, s10, v{L}")
            E(f"buffer_load_dword v{250+i}, v{250+i}, s[{S_X}:{S_X+3}], 0 idxen")
    if nc == 0:
        ncl()
        pfx(0, pf0)
        NCN += pf0
        stamp(E, opt, 3, 3)
        E(f"s_waitcnt vmcnt({NCN + w0})")
    elif nc == 1:
        E(f"s_cmp_lt_u32 s{S_WAVE}, 4")
        E("s_cbranch_scc0 M_nc0")
        ncl()
        E(f"s_waitcnt vmcnt({NCN + w0})")
        E("s_branch M_nc1")
        E.label("M_nc0")
        E(f"s_waitcnt vmcnt({w0})")
        E.label("M_nc1")
    else:
        E(f"s_waitcnt vmcnt({w0})")
    stamp(E, opt, 1, 1); stamp(E, opt, 4, 3)
    pte = opt.get("pte", (0, 0, 0))
    def pretouch(k):
        if not pte[k]: return
        E(f"s_mul_i32 s10, s{S_J}, {CH}")
        E(f"s_mul_i32 s11, s{S_WAVE}, {4 * pte[k]}")
        E(f"s_add_u32 s10, s10, s11")
        E(f"s_add_u32 s10, s10, {32 * sum(pte[:k])}")
        E(f"v_lshl_add_u32 v{250+k}, v{L}, 2, s10")
        if pte[k] < 32: E(f"s_mov_b32 exec_lo, {(1 << pte[k]) - 1}")
        if pte[k] < 64: E(f"s_mov_b32 exec_hi, {(1 << max(pte[k] - 32, 0)) - 1}")
        E(f"buffer_load_dword v{250+k}, v{250+k}, s[{S_EP}:{S_EP+3}], 0 idxen {opt.get('pt_flags', '')}")
        if pte[k] < 64: E("s_mov_b64 exec, -1")
    pretouch(0)
    if pte[0]: NCN += 1
    def mid(it):
        d, s, w, q, t = it
        E(f"v_and_b32 v{q}, 0x3fc, v{q}")
        E(f"ds_add_rtn_u32 v{RT + q - Q}, v{q}, v135 offset:{TZ}")
        E(f"v_mul_u32_u24 v{q}, {SSTR // 4}, v{q}")
    groups = [(40, range(0, 4)), (42, range(4, 6)), (44, range(6, 7))]
    for gi, (sm, js) in enumerate(groups):
        E(f"s_mov_b64 exec, s[{sm}:{sm+1}]")
        if gi == 2: E("s_cbranch_execz M_nog3a")
        rec_calc(E, opt, [(D1 + j, S1 + j, W1 + j, Q + j, TT + j) for j in js], 46, 48, 49, 128, mid)
    def put(j):
        E(f"v_min_u32 v{RT+j}, s50, v{RT+j}")
        E(f"v_mad_u32_u16 v{Q+j}, v{RT+j}, 4, v{Q+j} op_sel:[1,0,0,0]")
        E(f"v_bfe_u32 v{RT+j}, v{RT+j}, 16, 2")
        E(f"ds_write_b32 v{Q+j}, v{W1+j} offset:{STG}")
        E(f"v_mad_i32_i24 v{Q+j}, v{RT+j}, -3, v{Q+j}")
        E(f"ds_write_b8 v{Q+j}, v{D1+j} offset:{STG+12}")
    E("s_waitcnt lgkmcnt(0)")
    put(6)
    E.label("M_nog3a")
    E("s_waitcnt lgkmcnt(2)")
    for gi, (sm, js) in enumerate(groups[:2]):
        E(f"s_mov_b64 exec, s[{sm}:{sm+1}]")
        if gi == 1: E("s_waitcnt lgkmcnt(8)")
        for j in js: put(j)
    E("s_mov_b64 exec, -1")
    def jobc(lab):
        E(f"s_cmp_eq_u32 s{S_WAVE}, 7")
        E(f"s_cbranch_scc0 {lab}")
        E(f"s_mov_b32 s{S_T0}, {8*2048}")
        wdma(4, S_T0, 16 * 1024)
        E.label(lab)
    if nc == 1:
        E(f"s_cmp_lt_u32 s{S_WAVE}, 4")
        E("s_cbranch_scc1 M_nc2")
        ncl()
        E.label("M_nc2")
    if nc == 2: ncl()
    E(f"s_waitcnt vmcnt({(NCN if nc < 3 else 0) + w0 - 1})")
    if nc < 3: jobc("M_nojc0")
    S_TAG, S_TM = 72, 73
    E(f"v_readfirstlane_b32 s{S_TAG}, v{VT}")
    if lay < 2: E(f"s_lshl_b32 s74, s{S_J}, {15 if lay else 7}")
    else:
        E(f"s_lshr_b32 s74, s{S_J}, 3")
        E(f"s_lshl_b32 s75, s{S_WAVE}, 5")
        E(f"s_add_u32 s74, s74, s75")
        E(f"s_lshl_b32 s74, s74, 6")
        E(f"s_and_b32 s75, s{S_J}, 7")
        E(f"s_add_u32 s74, s74, s75")
        E(f"s_lshl_b32 s74, s74, 7")
    E(f"s_add_u32 s74, s74, {SL_OFF}")
    E(f"s_mov_b32 s{S_TM}, {TMASK}")
    E(f"s_orn2_b32 s{S_TAG}, s{S_TAG}, s{S_TM}")
    E(f"s_add_u32 s{S_TAG}, s{S_TAG}, 1")
    E(f"s_and_b32 s{S_TAG}, s{S_TAG}, s{S_TM}")
    E(f"s_mov_b32 s51, {32 << 16}")
    E("s_waitcnt lgkmcnt(0)")
    stamp(E, opt, 5, 3)
    E("s_barrier")
    stamp(E, opt, 2, 1)
    CD = 88
    for k in range(4):
        E(f"ds_read_b32 v{120+k}, v{CC0} offset:{TZ + k*256}")
        E(f"ds_read_b128 {vr(CD+4*k,4)}, v{CA0 if k < 2 else CA1} offset:{(k&1)*64*SSTR}")
    for k in range(4):
        E(f"s_waitcnt lgkmcnt({6-2*k})")
        E(f"v_cmp_le_u32 vcc, v129, v{120+k}")
        E(f"v_or_b32 v{CD+4*k+3}, s{S_TAG}, v{CD+4*k+3}")
        E(f"s_add_u32 s75, s74, {k*KST}")
        E("s_mov_b64 exec, vcc")
        E(f"buffer_store_dwordx4 {vr(CD+4*k,4)}, v{CG}, s[{S_WS}:{S_WS+3}], s75 offen {st}")
        E("s_mov_b64 exec, -1")
    E(f"v_max_u32 v120, v120, v121")
    E(f"v_max3_u32 v124, v120, v122, v123")
    E(f"v_cmp_le_u32 vcc, s51, v124")
    E("s_cbranch_vccz M_no2")
    E("s_mov_b64 exec, vcc")
    for k in range(4):
        E(f"ds_read_b128 {vr(CD+16+4*k,4)}, v{CA0 if k < 2 else CA1} offset:{(k&1)*64*SSTR + 128}")
    E("s_waitcnt lgkmcnt(0)")
    for k in range(4):
        E(f"v_or_b32 v{CD+16+4*k+3}, s{S_TAG}, v{CD+16+4*k+3}")
        E(f"s_add_u32 s75, s74, {k*KST + SL_LINE}")
        E(f"buffer_store_dwordx4 {vr(CD+16+4*k,4)}, v{CG}, s[{S_WS}:{S_WS+3}], s75 offen {st}")
    E("s_mov_b64 exec, -1")
    E.label("M_no2")
    stamp(E, opt, 3, 1)
    if opt.get("stw"):
        E("s_waitcnt vmcnt(0)")
        stamp(E, opt, 3, 1)
    if nc == 3:
        ncl(); jobc("M_nojc0")
    if xl: xgrp()
    pfa, pfc = opt.get("pf", (0, 0))
    pfx(0, pfa)
    pretouch(1)
    if pte[1]: pfa += 1
    srd(E, 4, 56, 57, 256)
    VB = TMP + 6
    E8 = TMP + 3
    WA = TMP + 5
    PV = PA
    if lay == 0:
        E(f"s_lshl_b32 s64, s3, 15")
        E(f"s_lshl_b32 s10, s{S_WAVE}, 12")
    if lay == 1:
        E(f"s_lshl_b32 s64, s3, 7")
        E(f"s_lshl_b32 s10, s{S_WAVE}, 20")
        PV = VT
        E(f"v_lshrrev_b32 v{t7}, 3, v{L}")
        E(f"v_and_b32 v{PV}, 0x70, v{PA}")
        E(f"v_lshl_add_u32 v{PV}, v{t7}, 15, v{PV}")
    if lay == 2:
        E(f"s_lshr_b32 s64, s3, 3")
        E(f"s_lshl_b32 s64, s64, 18")
        E(f"s_and_b32 s10, s3, 7")
        E(f"s_lshl_b32 s10, s10, 10")
        E(f"s_add_u32 s64, s64, s10")
        E(f"s_lshl_b32 s10, s{S_WAVE}, 15")
    E(f"s_add_u32 s64, s64, s10")
    E(f"s_add_u32 s64, s64, {SL_OFF}")
    for u in range(1, 4): E(f"s_add_u32 s{64+u}, s64, {u*(1024, 1 << 18, 8192)[lay]}")
    def poll_ld(u):
        E(f"buffer_load_dwordx4 {vr(H+4*u,4)}, v{PV}, s[{S_WS}:{S_WS+3}], s{64+u} offen {ld}")
    pp = opt.get("pp", 1)
    E(f"v_lshlrev_b32 v57, 2, v{m}")
    E(f"v_lshl_add_u32 v57, v{h}, 10, v57")
    E(f"s_lshl_b32 s10, s{S_WAVE}, 11")
    E(f"s_add_u32 s10, s10, {WST}")
    E(f"v_add_u32 v58, s10, v57")
    E(f"v_add_u32 v56, s10, v{PA}")
    E(f"s_waitcnt vmcnt({(4 if nc < 3 else 0) + pfa + 4 * xl})")
    stamp(E, opt, 1, 4)
    if pp == 0:
        for u in range(4): poll_ld(u)
    for j in range(8): E(f"ds_read_b32 v{j}, v58 offset:{j*128}")
    E(f"v_lshrrev_b32 v{t6}, 1, v{m}")
    E(f"v_and_b32 v{t6}, 7, v{t6}")
    E(f"v_xor_b32 v{t6}, v{t6}, v{h}")
    E(f"v_lshlrev_b32 v{t7}, 7, v{m}")
    E(f"v_add_u32 v{t7}, s{S_XR}, v{t7}")
    for s in range(4):
        E(f"v_xor_b32 v{XAD+s}, {2*s}, v{t6}")
        E(f"v_lshl_add_u32 v{XAD+s}, v{XAD+s}, 4, v{t7}")
    E(f"v_lshrrev_b32 v{t6}, 3, v{m}")
    E(f"v_and_b32 v{t6}, 1, v{t6}")
    E(f"v_xor_b32 v{t6}, v{t6}, v{h}")
    E(f"v_lshlrev_b32 v{t7}, 5, v{m}")
    E(f"v_add_u32 v{t7}, s{S_ER}, v{t7}")
    E(f"v_lshl_add_u32 v{EAD}, v{t6}, 4, v{t7}")
    E(f"v_add_u32 v{CZ}, {TZ}, v{h16}")
    E(f"v_and_b32 v{t6}, 16, v{L}")
    E(f"v_lshlrev_b32 v{t6}, 1, v{t6}")
    E(f"v_and_b32 v{t7}, 3, v{L}")
    E(f"v_lshl_add_u32 v{t6}, v{t7}, 3, v{t6}")
    E(f"v_add_u32 v{CS}, {TS}, v{t6}")
    E(f"v_add_u32 v{WA}, {WST}, v{PA}")
    E(f"s_cmp_lt_u32 s{S_WAVE}, 4")
    E(f"s_cselect_b32 s10, 1.0, {NLOG2E}")
    E("s_waitcnt lgkmcnt(0)")
    for j in range(8): E(f"ds_read_b32 v{8+j}, v58 offset:{18*1024 + j*128}")
    def scaled(R, sc, addr, off):
        for j in range(8):
            E(f"v_lshlrev_b32 v{24+j}, 16, v{R+j}")
            E(f"v_and_b32 v{R+j}, 0xffff0000, v{R+j}")
        for j in range(8):
            E(f"v_mul_f32 v{24+j}, s{sc}, v{24+j}")
            E(f"v_mul_f32 v{R+j}, s{sc}, v{R+j}")
        for j in range(4):
            E(f"v_cvt_pk_bf16_f32 v{32+j}, v{24+2*j}, v{25+2*j}")
            E(f"v_cvt_pk_bf16_f32 v{36+j}, v{R+2*j}, v{R+1+2*j}")
        E(f"ds_write_b128 v{addr}, v[32:35] offset:{off}")
        E(f"ds_write_b128 v{addr}, v[36:39] offset:{off+1024}")
    scaled(0, 10, 56, 0)
    E("s_mov_b32 s10, 0x05040100")
    E("s_mov_b32 s11, 0x07060302")
    E("s_waitcnt lgkmcnt(2)")
    for j in range(4):
        E(f"v_perm_b32 v{40+j}, v{9+2*j}, v{8+2*j}, s10")
        E(f"v_perm_b32 v{44+j}, v{9+2*j}, v{8+2*j}, s11")
    E(f"ds_write_b128 v56, v[40:43] offset:{18*1024}")
    E(f"ds_write_b128 v56, v[44:47] offset:{19*1024}")
    E(f"s_cmp_eq_u32 s{S_WAVE}, 7")
    E("s_cbranch_scc0 M_nojc")
    for j in range(8): E(f"ds_read_b32 v{16+j}, v57 offset:{WST + 16*1024 + j*128}")
    E(f"s_mov_b32 s10, {NLOG2E}")
    E("s_waitcnt lgkmcnt(0)")
    scaled(16, 10, WA, 16 * 1024)
    E.label("M_nojc")
    def reset_cnt(cen, R):
        E(f"v_and_b32 v{R}, 31, v{TID}")
        E(f"v_lshrrev_b32 v{R+1}, 1, v{R}")
        E(f"v_mul_u32_u24 v{R+1}, {LCAP*8}, v{R+1}")
        E(f"v_and_b32 v{R+2}, 1, v{R}")
        E(f"v_add_u32 v{R+1}, {LIST + cen*8}, v{R+1}")
        E(f"v_cmp_eq_u32 vcc, 1, v{R+2}")
        E(f"v_sub_u32 v{R+2}, 7, v{R+1}")
        E("s_nop 0")
        E(f"v_cndmask_b32 v{R+1}, v{R+1}, v{R+2}, vcc")
        E(f"v_cmp_gt_u32 vcc, 16, v{R}")
        E(f"v_lshlrev_b32 v{R}, 2, v{R}")
        E("s_nop 0")
        E(f"v_cndmask_b32 v{R+1}, 0, v{R+1}, vcc")
        E(f"ds_write_b32 v{R}, v{R+1} offset:{CNT}")
    TB = 140
    E(f"s_cmp_eq_u32 s{S_WAVE}, 6")
    E("s_cbranch_scc0 M_nocnt")
    reset_cnt(opt.get('cen', CEN0), TB)
    E.label("M_nocnt")
    E(f"v_add_u32 v60, s{S_XR}, v{PA}")
    for u in range(4):
        E(f"s_mov_b64 s[{40+2*u}:{41+2*u}], -1")
    E(f"s_mov_b32 s{S_T1}, {LIST}")
    E(f"s_mov_b32 s{S_MAX}, 0")
    E("s_waitcnt lgkmcnt(0)")
    E("s_barrier")
    stamp(E, opt, 2, 4)
    if pp == 1:
        for u in range(4): poll_ld(u)
        pfx(pfa, pfc)
        pretouch(2)
        if pte[2]: pfc += 1
    if xl: E(f"s_waitcnt vmcnt({pfa + (4 + pfc if pp < 2 else 0)})")
    for i in range(4):
        E(f"ds_write_b128 v60, {vr(X+4*i,4)} offset:{i*1024}")
    E(f"s_cmp_eq_u32 s{S_WAVE}, 3")
    E("s_cbranch_scc0 M_notab")
    for i in range(4): E(f"v_mov_b32 v{TB+i}, 0")
    for k in range(5):
        E(f"ds_write_b128 v{PA}, {vr(TB,4)} offset:{TZ + k*1024}")
    E(f"v_and_b32 v{TB+4}, 0x13, v{m}")
    E(f"v_and_b32 v{TB+5}, 4, v{m}")
    E(f"v_lshl_add_u32 v{TB+4}, v{TB+5}, 1, v{TB+4}")
    E(f"v_and_b32 v{TB+5}, 8, v{m}")
    E(f"v_lshrrev_b32 v{TB+5}, 1, v{TB+5}")
    E(f"v_add_u32 v{TB+4}, v{TB+4}, v{TB+5}")
    E(f"v_cmp_lt_u32 vcc, 31, v{L}")
    E(f"v_mul_u32_u24 v{TB+6}, 80, v{L}")
    E(f"v_mov_b32 v{TB+7}, 0x3f80")
    E(f"v_cndmask_b32 v{TB+4}, v{TB+4}, v{m}, vcc")
    E(f"v_cmp_eq_u32 vcc, 31, v{m}")
    E(f"v_lshl_add_u32 v{TB+6}, v{TB+4}, 1, v{TB+6}")
    E("s_nop 0")
    E(f"v_cndmask_b32 v{TB+7}, v{TB+7}, v{TB}, vcc")
    E(f"ds_write_b16 v{TB+6}, v{TB+7} offset:{TZ}")
    E.label("M_notab")
    E(f"v_lshrrev_b32 v{VB}, 3, v{L}")
    E(f"s_lshl_b32 s10, s{S_WAVE}, 5")
    E(f"v_add_u32 v{VB}, s10, v{VB}")
    E(f"v_mul_u32_u24 v{VB}, {CH}, v{VB}")
    E(f"v_mov_b32 v{E8}, 8")
    E("s_waitcnt lgkmcnt(0)")
    if pp == 4:
        for u in range(4): poll_ld(u)
    for s_ in range(4): rd_x(E, s_, 0)
    for i in range(8):
        E.ds(f"ds_read_b128 {vr(WB+4*i,4)}, v{WA} offset:{i*1024}", rng(WB + 4 * i, 4))
    for s_ in range(4):
        for f in range(2):
            E.need(rng(wb(s_, f), 4))
            E(mfma(zb(f), X + 4 * s_, wb(s_, f), None if s_ == 0 else zb(f)))
            i = s_ * 2 + f
            E.ds(f"ds_read_b128 {vr(WV+4*i,4)}, v{WA} offset:{(26+i)*1024}", rng(WV + 4 * i, 4))
    if pp == 3:
        for u in range(4): poll_ld(u)
    for s_ in range(4):
        for f in range(2):
            E.need(rng(wv(s_, f), 4))
            E(mfma(ACC + 16 * f, X + 4 * s_, wv(s_, f), None if s_ == 0 else ACC + 16 * f))
            i = s_ * 2 + f
            E.ds(f"ds_read_b128 {vr(WB+4*i,4)}, v{WA} offset:{(8+i)*1024}", rng(WB + 4 * i, 4))
    for i in range(2):
        E.ds(f"ds_read_b128 {vr(WC+4*i,4)}, v{WA} offset:{(16+i)*1024}", rng(WC + 4 * i, 4))
    E(f"s_mov_b32 s10, {NLOG2E}")
    for i in range(32):
        E(f"v_mul_f32 v{Z0+i}, s10, v{Z0+i}")
    for f in range(2):
        for s_ in range(2):
            for jj in range(4):
                E(f"v_cvt_pk_bf16_f32 v{xa(s_,f)+jj}, v{zb(f)+8*s_+2*jj}, v{zb(f)+8*s_+2*jj+1}")
    E.drain()
    for i in range(8):
        E.ds(f"ds_read_b128 {vr(WV+4*i,4)}, v{WA} offset:{(18+i)*1024}", rng(WV + 4 * i, 4))
    E.drain()
    if pp == 2:
        for u in range(4): poll_ld(u)
    stamp(E, opt, 4, 1); stamp(E, opt, 3, 4); stamp(E, opt, 1, 5)
    R = EE
    MK = [48, 50, 52, 54, 56, 58, 60, 62, 68, 70, 8, 74]
    VBU, SEL, DX = X, X + 4, X + 8
    for u in range(4): E(f"v_add_u32 v{VBU+u}, {u*8*CH}, v{VB}")
    for j in range(3): E(f"v_mov_b32 v{SEL+j}, {0x0c040100 + (j << 16)}")
    if opt.get("ser"):
        E(f"s_mov_b32 s10, s{S_WAVE}")
        E.label("M_ser0")
        E("s_cmp_eq_u32 s10, 0")
        E("s_cbranch_scc1 M_ser1")
        E("s_barrier")
        E("s_sub_u32 s10, s10, 1")
        E("s_branch M_ser0")
        E.label("M_ser1")
    if pfc:
        E(f"s_waitcnt vmcnt({pfc})")
        E("s_branch M_poll1")
    E.label("M_poll")
    E("s_waitcnt vmcnt(0)")
    E.label("M_poll1")
    stamp(E, opt, 4, 4); stamp(E, opt, 2, 5)
    for k in MK: E(f"s_mov_b64 s[{k}:{k+1}], 0")
    for u in range(4):
        sm = 40 + 2 * u; mk = MK[3*u:3*u+3]; A = H + 4 * u
        E(f"s_mov_b64 exec, s[{sm}:{sm+1}]")
        E(f"s_cbranch_execz M_pu{u}")
        E(f"v_xor_b32 v{DX}, s{S_TAG}, v{A+3}")
        E(f"v_cmp_ne_u16 s[{mk[2]}:{mk[2]+1}], -1, v{A+2}")
        E(f"v_and_b32 v{DX+1}, s{S_TM}, v{DX}")
        E(f"v_cmp_eq_u32 vcc, 0, v{DX+1}")
        for j in range(3): E(f"v_lshrrev_b32 v{Z1+3*u+j}, 26, v{A+j}")
        E(f"s_and_b64 s[{mk[2]}:{mk[2]+1}], s[{mk[2]}:{mk[2]+1}], vcc")
        E(f"s_and_b32 s{mk[0]}, s{mk[2]}, 0x7f7f7f7f")
        E(f"s_and_b32 s{mk[0]+1}, s{mk[2]+1}, 0x7f7f7f7f")
        E(f"s_add_u32 s10, s{mk[0]}, 0x01010101")
        E(f"s_add_u32 s11, s{mk[0]+1}, 0x01010101")
        E(f"s_xor_b64 s[10:11], s[10:11], s[{mk[0]}:{mk[0]+1}]")
        E(f"s_and_b64 s[10:11], s[10:11], exec")
        E(f"s_and_b64 s[{mk[2]}:{mk[2]+1}], s[{mk[2]}:{mk[2]+1}], s[10:11]")
        E(f"s_andn2_b64 vcc, s[10:11], vcc")
        E(f"s_cselect_b64 s[{mk[2]}:{mk[2]+1}], 0, s[{mk[2]}:{mk[2]+1}]")
        E(f"s_mov_b64 s[{mk[0]}:{mk[0]+1}], 0")
        E(f"s_cbranch_scc1 M_pl{u}")
        E(f"s_mov_b64 exec, s[10:11]")
        E(f"v_cmp_ne_u16 s[{mk[0]}:{mk[0]+1}], -1, v{A}")
        E(f"v_cmp_ne_u16 s[{mk[1]}:{mk[1]+1}], -1, v{A+1}")
        for j in range(3): E(f"v_and_b32 v{Z1+3*u+j}, 0x3c, v{Z1+3*u+j}")
        E(f"s_lshr_b64 s[{sm}:{sm+1}], s[{mk[2]}:{mk[2]+1}], 7")
        for j in range(3):
            i = 3 * u + j
            E(f"s_mov_b64 exec, s[{mk[j]}:{mk[j]+1}]")
            E(f"ds_add_rtn_u32 v{Z1+i}, v{Z1+i}, v{E8} offset:{CNT}")
            E(f"v_bfe_u32 v{R+2*i+1}, v{A+j}, 16, 12")
            E(f"v_bfe_i32 v{Z0+i}, v{A+j}, 28, 1")
            E(f"v_perm_b32 v{R+2*i}, v{DX}, v{A+j}, v{SEL+j}")
            E(f"v_add_u32 v{R+2*i+1}, v{R+2*i+1}, v{VBU+u}")
        E(f"s_and_b32 s{sm}, s{sm}, 0x01010101")
        E(f"s_and_b32 s{sm+1}, s{sm+1}, 0x01010101")
        E(f"s_mul_i32 s{sm}, s{sm}, 0xff")
        E(f"s_mul_i32 s{sm+1}, s{sm+1}, 0xff")
        E(f"s_add_u32 s{64+u}, s{64+u}, {SL_LINE}")
        E(f"s_mov_b64 exec, s[{sm}:{sm+1}]")
        E(f"s_cbranch_execz M_pu{u}")
        E(f"s_cmp_lt_u32 s{64+u}, {WS_USE}")
        E(f"s_cbranch_scc0 M_giveup")
        E.label(f"M_pl{u}")
        poll_ld(u)
        E.label(f"M_pu{u}")
    E("s_waitcnt lgkmcnt(0)")
    stamp(E, opt, 3, 5)
    for j in range(12):
        E(f"s_mov_b64 exec, s[{MK[j]}:{MK[j]+1}]")
        E(f"v_xor_b32 v{Z1+j}, v{Z1+j}, v{Z0+j}")
        E(f"v_max_i32 v{Z1+j}, s{S_T1}, v{Z1+j}")
        E(f"ds_write_b64 v{Z1+j}, {vr(R+2*j,2)}")
    E("s_or_b64 s[10:11], s[40:41], s[42:43]")
    E("s_or_b64 s[48:49], s[44:45], s[46:47]")
    E(f"s_add_u32 s{S_MAX}, s{S_MAX}, 1")
    E("s_or_b64 s[10:11], s[10:11], s[48:49]")
    E("s_cbranch_scc0 M_routed")
    E(f"s_cmp_lt_u32 s{S_MAX}, {opt.get('tmo', 4000)}")
    E("s_cbranch_scc1 M_poll")
    E.label("M_giveup")
    E("s_mov_b64 exec, -1")
    E(f"v_mov_b32 v{Z0}, 0")
    E(f"ds_write_b32 v{Z0}, v{E8} offset:{FLG}")
    E("s_waitcnt vmcnt(0)")
    E.label("M_routed")
    if opt.get("ser"):
        E(f"s_mov_b32 s10, s{S_WAVE}")
        E.label("M_ser2")
        E("s_cmp_eq_u32 s10, 7")
        E("s_cbranch_scc1 M_ser3")
        E("s_barrier")
        E("s_add_u32 s10, s10, 1")
        E("s_branch M_ser2")
        E.label("M_ser3")
    E("s_mov_b64 exec, -1")
    E(f"s_add_u32 s10, s{S_WAVE}, 254")
    E(f"v_mov_b32 v{VT}, s10")
    E(f"s_mov_b32 s{S_T0}, s{S_TAG}")
    E("s_waitcnt lgkmcnt(0)")
    stamp(E, opt, 4, 5)
    E("s_barrier")
    stamp(E, opt, 5, 5)
    stamp(E, opt, 5, 1); stamp(E, opt, 0, 2); stamp(E, opt, 5, 4)
    if opt.get("prof") == 7:
        E("v_mov_b32 v250, 0"); E("s_mov_b32 s86, 0"); tstamp(E, opt)
    E.label("M_entry")
    E(f"v_and_b32 v{Z0}, 7, v{TID}")
    E(f"v_lshlrev_b32 v{Z0+1}, 3, v{Z0}")
    E(f"ds_read_b64 {vr(Z0+2,2)}, v{Z0+1} offset:{CNT}")
    E(f"ds_read_b32 v{Z0+9}, v{Z0+1} offset:{FLG}")
    E(f"v_and_b32 v{L}, 63, v{TID}")
    E(f"v_and_b32 v{LPX}, 0x38, v{L}")
    E(f"v_lshrrev_b32 v{LPE}, 1, v{L}")
    E(f"v_lshlrev_b32 v{LPE}, 3, v{LPE}")
    E(f"v_and_b32 v{LPZ}, 31, v{L}")
    E(f"v_lshlrev_b32 v{LPZ}, 3, v{LPZ}")
    E(f"v_and_b32 v{LPS}, 12, v{L}")
    E(f"v_lshlrev_b32 v{LPS}, 1, v{LPS}")
    E(f"v_and_b32 v{Z0+4}, 32, v{L}")
    E(f"v_mov_b32 v{Z0+6}, {0xFFFF | (31 << 16)}")
    E(f"s_mov_b32 s{S_80}, 80")
    E(f"v_mov_b32 v{Z0+7}, 0x100000")
    E(f"v_lshlrev_b32 v{Z0+5}, 3, v{L}")
    E(f"v_mov_b32 v{Z0+8}, {LIST - 1024}")
    E(f"s_mov_b32 s11, {K2_LDS - 1024}")
    E("s_waitcnt lgkmcnt(0)")
    E(f"v_sub_u32 v{Z0+3}, 7, v{Z0+3}")
    E(f"v_mov_b32_dpp v{Z0+8}, v{Z0+2} row_shr:1 row_mask:0xf bank_mask:0xf")
    E(f"v_cmp_lt_i32 s[{S_MASK}:{S_MASK+1}], s11, v{Z0+2}")
    E(f"v_readlane_b32 s10, v{Z0+2}, s{S_G}")
    E(f"v_add_u32 v{Z0+8}, 1024, v{Z0+8}")
    E(f"v_readlane_b32 s{S_LB}, v{Z0+3}, s{S_G}")
    E(f"v_cmp_lt_i32 vcc, v{Z0+3}, v{Z0+8}")
    E(f"v_readfirstlane_b32 s{S_MASK+1}, v{Z0+9}")
    E(f"s_or_b32 s11, vcc_lo, s{S_MASK}")
    E(f"s_or_b32 s11, s11, s{S_MASK+1}")
    E(f"s_and_b32 s11, s11, 0xff")
    E("s_cbranch_scc1 M_slowinit")
    E(f"v_add_u32 v{LPX}, s{S_LB}, v{LPX}")
    E(f"v_add3_u32 v{LPE}, v{LPE}, s{S_LB}, 4")
    E(f"s_sub_u32 s{S_NT}, s10, s{S_LB}")
    E(f"v_add_u32 v{Z0+5}, s10, v{Z0+5}")
    E.ds(f"ds_write_b64 v{Z0+5}, {vr(Z0+6,2)}")
    E.ds(f"ds_write_b64 v{Z0+5}, {vr(Z0+6,2)} offset:512")
    E(f"s_add_u32 s10, s{S_LB}, 2")
    E(f"v_add_u32 v{LPZ}, s10, v{LPZ}")
    E(f"v_add3_u32 v{LPS}, v{LPS}, v{Z0+4}, s10")
    E(f"s_add_u32 s{S_NT}, s{S_NT}, 255")
    E(f"s_lshr_b32 s{S_NT}, s{S_NT}, 8")
    lead = opt.get("lead", 1)
    def fill(t):
        rd_list_dma(E, t)
        E.need([EPR])
        E(f"v_and_b32 v{EPR}, {EMASK}, v{EPR}")
        for g in dma_tile(E, t):
            reg = int(re.search(r"v\[(\d+):", g[2]).group(1))
            E(g[0]); E.need([reg]); E(g[1]); E(g[2])
    b3 = opt.get("b3", 0)
    f1late = opt.get("f1late", 1)
    if opt.get("leadprio", 3):
        E(f"s_lshr_b32 s10, s{S_WAVE}, 2")
        E(f"s_cmp_eq_u32 s10, {lead}")
        if b3 >= 2:
            E("s_cbranch_scc1 M_fillp")
            E("s_barrier")
            E("s_branch M_fill0")
            E.label("M_fillp")
        else:
            E("s_cbranch_scc0 M_fill0")
        E(f"s_setprio {opt.get('leadprio', 3)}")
        E.label("M_fill0")
    fill(0)
    stamp(E, opt, 1, 2)
    if b3 == 1: E("s_barrier")
    if b3 == 3:
        E(f"s_cmp_eq_u32 s10, {lead}")
        E("s_cbranch_scc0 M_fq")
        E("s_barrier")
        E.label("M_fq")
    stamp(E, opt, 2, 2)
    if not f1late: fill(1)
    if b3 == 2:
        E(f"s_cmp_eq_u32 s10, {lead}")
        E("s_cbranch_scc0 M_fq")
        E("s_barrier")
        E.label("M_fq")
    stamp(E, opt, 3, 2)
    E(f"s_cmp_eq_u32 s{S_NT}, 0")
    E(f"s_cbranch_scc1 M_exit")
    rd_dz(E, 0)
    for w in range(4): rd_ds(E, 0, w)
    if f1late: rd_list_dma(E, 1)
    elif opt.get("dpos", 4) < 4: rd_list_dma(E, 2)
    for i in range(16): E(f"v_mov_b32 v{H+i}, 0")
    for i in range(8): E(f"v_mov_b32 v{S+i}, 0")
    E.need([DZ] + rng(DS, 4))
    E(f"v_mad_u32_u24 v{DZ}, v{DZ}, s{S_80}, v{CZ}")
    for w in range(4): E(f"v_mad_u32_u24 v{DS+w}, v{DS+w}, s{S_80}, v{CS}")
    rd_oh(E, 0); rd_oh(E, 1)
    E.need([EPR])
    E(f"v_and_b32 v{EPR}, {EMASK}, v{EPR}")
    E.need(rng(OH, 4))
    E(mfma(Z0, OH, xa(0, 0), None))
    E.need(rng(OH + 4, 4))
    E(mfma(Z0, OH + 4, xa(1, 0), Z0))
    E("s_waitcnt vmcnt(%d)" % (0 if f1late else 5))
    stamp(E, opt, 4, 2)
    rd_e(E, 0)
    for s_ in range(4): rd_x(E, s_, 0)
    E.need(rng(EE, 4))
    E(mfma(Z0, EE, wc(0), Z0))
    for s_ in range(4):
        E.need(rng(X + 4 * s_, 4))
        E(mfma(Z0, X + 4 * s_, wb(s_, 0), Z0))
    assert not E.pend
    if not opt.get("dpos", 4):
        for g in dma_tile(E, 0):
            for i in g: E(i)
    if f1late:
        for g in dma_tile(E, 1):
            for i in g: E(i)
    stamp(E, opt, 5, 2)
    if opt.get("prof"):
        E(f"s_mov_b32 s74, s{S_NT}")
        if opt.get("prof") in (1, 4, 5): E(f"s_mov_b32 s74, s{S_MAX}")
        E("s_memtime s[72:73]")
        E("s_waitcnt lgkmcnt(0)")
    if opt.get("prof") == 6:
        for r in (76, 78, 80, 82, 84, 86): E(f"s_mov_b32 s{r}, 0")
    E.label("M_loop")
    tstamp(E, opt)
    tile_body(E, 0, opt)
    E(f"s_sub_u32 s{S_NT}, s{S_NT}, 1")
    E(f"s_cmp_eq_u32 s{S_NT}, 0")
    E("s_cbranch_scc1 M_drain")
    tstamp(E, opt)
    tile_body(E, 1, opt)
    E(f"s_sub_u32 s{S_NT}, s{S_NT}, 1")
    E(f"s_cmp_lg_u32 s{S_NT}, 0")
    E("s_cbranch_scc1 M_loop")
    E.label("M_drain")
    tstamp(E, opt)
    for i in range(8): E(f"v_cvt_pk_bf16_f32 v{MSG+i}, v{H+2*i}, v{H+2*i+1}")
    E("s_nop 1")
    E(mfma(ACC + 16, S, MSG, ACC + 16))
    E(mfma(ACC + 16, S + 4, MSG + 4, ACC + 16))
    E.label("M_exit")
    E(f"s_cmp_eq_u32 s{S_SLOW}, 0")
    E("s_cbranch_scc1 M_epi")
    E("s_waitcnt vmcnt(0) lgkmcnt(0)")
    E(f"s_add_u32 s{S_J}, s{S_J}, 512")
    E(f"s_cmp_ge_u32 s{S_J}, {N_EDGES}")
    E("s_cbranch_scc1 M_epi")
    E.label("M_batch")
    E("s_setprio 0")
    E("s_load_dwordx4 s[44:47], s[0:1], 16")
    E("s_nop 7")
    E("s_nop 7")
    E("s_barrier")
    reset_cnt(0, Z0 + 8)
    E(f"v_add_u32 v{H+1}, s{S_J}, v{TID}")
    E(f"v_lshlrev_b32 v{H+4}, 2, v{H+1}")
    E("s_waitcnt lgkmcnt(0)")
    srd(E, 60, 46, 47, N_EDGES * 4)
    srd(E, 64, 44, 45, N_EDGES * 4)
    E(f"buffer_load_dword v{H+2}, v{H+4}, s[60:63], 0 offen")
    E(f"buffer_load_dword v{H}, v{H+4}, s[64:67], 0 offen")
    E("s_mov_b32 s46, 85599")
    E(f"s_mov_b32 s48, 0")
    E(f"s_mov_b32 s49, {1 << 29}")
    E(f"s_mov_b32 s50, {N_EDGES}")
    E(f"v_mov_b32 v{H+6}, -49")
    E(f"v_mov_b32 v{E8}, 8")
    E(f"v_cmp_gt_u32 s[40:41], s50, v{H+1}")
    E("s_waitcnt vmcnt(0)")
    rec_calc(E, opt, [(H + 2, H, H + 1, H + 3, H + 5)], 46, 48, 49, H + 6, None, False)
    E(f"v_lshl_or_b32 v{H}, v{H+2}, 16, v{H}")
    E(f"v_lshrrev_b32 v{H+3}, 2, v{H+3}")
    E(f"v_cmp_eq_u32 vcc, s3, v{H+3}")
    E("s_barrier")
    E("s_and_b64 exec, vcc, s[40:41]")
    E(f"v_lshrrev_b32 v{Z0}, 26, v{H+1}")
    E(f"ds_add_rtn_u32 v{Z1}, v{Z0}, v{E8} offset:{CNT}")
    E("s_waitcnt lgkmcnt(0)")
    E(f"ds_write_b64 v{Z1}, {vr(H,2)}")
    E("s_mov_b64 exec, -1")
    E("s_waitcnt lgkmcnt(0)")
    E("s_barrier")
    E("s_branch M_entry")
    E.label("M_slowinit")
    E(f"s_mov_b32 s{S_SLOW}, 1")
    E(f"s_mov_b32 s{S_J}, 0")
    E(f"v_mov_b32 v{VT}, 1")
    E(f"v_mov_b32 v{Z0}, 0")
    E(f"s_cmp_eq_u32 s{S_WAVE}, 1")
    E("s_cbranch_scc0 M_batch")
    E("s_mov_b64 exec, 1")
    E(f"buffer_atomic_add v{VT}, v{Z0}, s[4:7], 0 offen sc0 sc1")
    E("s_mov_b64 exec, -1")
    E("s_branch M_batch")
    E.label("M_epi")
    stamp(E, opt, 6)
    if opt.get("prof"):
        E("s_memtime s[92:93]")
        E("s_waitcnt lgkmcnt(0)")
        E("s_sub_u32 s92, s92, s72")
        E("s_lshl_b32 s92, s92, 8")
        E("s_or_b32 s74, s74, s92")
    E(f"s_mov_b32 s10, {NLOG2E}")
    E(f"v_and_b32 v{TMP}, 31, v{TID}")
    E(f"v_lshlrev_b32 v{TMP}, 2, v{TMP}")
    E(f"v_and_b32 v{TMP+1}, 32, v{TID}")
    E(f"v_lshl_add_u32 v{TMP}, v{TMP+1}, 4, v{TMP}")
    E(f"v_readfirstlane_b32 s11, v{VT}")
    E(f"v_mov_b32 v{TMP+2}, 4")
    E(f"v_mov_b32 v{TMP+3}, s{S_T0}")
    E("s_cmp_eq_u32 s11, 255")
    E("s_cbranch_scc0 M_noep")
    E(f"buffer_store_dword v{TMP+3}, v{TMP+2}, s[{S_WS}:{S_WS+3}], 0 offen")
    E.label("M_noep")
    E(f"s_lshl_b32 s11, s{S_NODE}, 7")
    E("s_nop 7")
    regs = [ACC + r for r in range(13)] + [ACC + 16 + r for r in range(13)]
    tmp = {a: Z0 + (a - ACC) for a in regs}
    for a in regs: E(f"v_mul_f32 v{tmp[a]}, s10, v{a}")
    for a in regs: E(f"v_exp_f32 v{tmp[a]}, v{tmp[a]}")
    for a in regs: E(f"v_add_f32 v{tmp[a]}, 1.0, v{tmp[a]}")
    for a in regs: E(f"v_rcp_f32 v{tmp[a]}, v{tmp[a]}")
    for a in regs: E(f"v_mul_f32 v{a}, v{a}, v{tmp[a]}")
    of = opt.get("out_flags", "sc1")
    for r in range(13):
        E(f"v_cvt_pk_bf16_f32 v{H+r}, v{ACC+r}, v{ACC+16+r}")
        if r < 12:
            E(f"buffer_store_dword v{H+r}, v{TMP}, s[{S_OUT}:{S_OUT+3}], s11 offen offset:{((r&3)+8*(r>>2))*128} {of}")
    E(f"s_cmp_lt_u32 s{S_WAVE}, 4")
    E("s_cbranch_scc0 M_end2")
    E("s_mov_b32 exec_hi, 0")
    E(f"buffer_store_dword v{H+12}, v{TMP}, s[{S_OUT}:{S_OUT+3}], s11 offen offset:{24*128} {of}")
    E.label("M_end2")
    prof_out(E, opt, S_WS, S_WAVE, 0x100000, 8, 74)
    E.label("M_end")
    E("s_endpgm")

def desc(name, vgpr, sgpr=102):
    acc = (vgpr + 3) // 4 * 4
    return [".p2align 6", f".amdhsa_kernel {name}", f"  .amdhsa_next_free_vgpr {vgpr}",
            f"  .amdhsa_next_free_sgpr {sgpr}", f"  .amdhsa_accum_offset {acc}",
            "  .amdhsa_group_segment_fixed_size 0", "  .amdhsa_kernarg_size 80",
            "  .amdhsa_user_sgpr_count 2", "  .amdhsa_user_sgpr_kernarg_segment_ptr 1",
            "  .amdhsa_system_sgpr_workgroup_id_x 1", ".end_amdhsa_kernel"]

def generate(opt):
    global EFLAGS, EMASK
    EMASK = opt.get("emask", 0x1fffff)
    EFLAGS = opt.get("e_flags", "")
    ref = open(f"cdna_kernels/{NAME}.s.ref").read().split("\n")
    hdr = [l for l in ref if l.startswith(";") and "@launch" not in l and "Override" not in l and "Harness parses" not in l]
    out = hdr[:]
    if opt.get("aslist"):
        out.append(f"; @launch kernel={NAME}_kernel grid=(256,1,1) block=(512,1,1) lds={K2_LDS}")
    else:
        out.append(f"; @launch grid=(256,1,1) block=(512,1,1) lds={K2_LDS}")
    out.append('.amdgcn_target "amdgcn-amd-amdhsa--gfx950"')
    out.append(".text")
    nm = NAME + "_kernel"
    out += [f".globl {nm}", ".p2align 8", f".type {nm},@function"]
    E = Em(); gen_k(E, opt); out += E.L
    out.append('.section .rodata,"a"')
    out += desc(nm, 256 if (opt.get("pf") or opt.get("pf0") or opt.get("prof") == 7 or opt.get("pte")) else K2_VGPR)
    return "\n".join(out) + "\n"

if __name__ == "__main__":
    opt = {}
    path = f"cdna_kernels/{NAME}.s"
    for a in sys.argv[1:]:
        k, v = a.split("=", 1)
        if k == "out": path = v
        else:
            try: v = eval(v)
            except Exception: pass
            opt[k] = v
    open(path, "w").write(generate(opt))
    print("wrote", path)
```

```python
import sys, re

NAME = "gather_scatter__edge_featured_mpnn_egc__graph"
N_NODES = 50000
N_EDGES = 800000
CH = 3128
SL_OFF = 0x100000
SL_LINE = 0x800000
NLINE = 2
WS_USE = SL_OFF + NLINE * SL_LINE
NLOG2E = 0xBFB8AA3B

class Em:
    def __init__(self):
        self.L = []
        self.pend = []
    def __call__(self, s):
        self.L.append("    " + s)
    def label(self, s):
        self.L.append(s + ":")
    def c(self, s):
        self.L.append("    ; " + s)
    def ds(self, s, dst=()):
        self(s)
        self.pend.append(set(dst))
        assert len(self.pend) <= 15, "too many outstanding LDS ops"
    def need(self, regs):
        regs = set(regs)
        last = -1
        for i, d in enumerate(self.pend):
            if d & regs:
                last = i
        if last >= 0:
            n = len(self.pend) - 1 - last
            self(f"s_waitcnt lgkmcnt({n})")
            self.pend = self.pend[last + 1:]
    def drain(self):
        self("s_waitcnt lgkmcnt(0)")
        self.pend = []

PROF_OFF = 0x4000000
def stamp(E, opt, i, only=None):
    if opt.get("prof") and (only is None or opt.get("prof") == only):
        E(f"s_memrealtime s[{76+2*i}:{77+2*i}]")
        E(f"s_memtime s[94:95]")
        E("s_waitcnt lgkmcnt(0)")
        E(f"s_mov_b32 s{77+2*i}, s94")
        E.pend = []
def tstamp(E, opt):
    if opt.get("prof") == 7:
        E("s_memrealtime s[96:97]")
        E("s_memtime s[98:99]")
        E("s_waitcnt lgkmcnt(0)")
        E("s_and_b32 s96, s96, 0xffff")
        E("s_lshl_b32 s98, s98, 14")
        E("s_and_b32 s98, s98, 0xffff0000")
        E("s_or_b32 s96, s96, s98")
        E("s_min_u32 s86, s86, 15")
        E("s_mov_b32 m0, s86")
        E("v_writelane_b32 v250, s96, m0")
        E("s_add_u32 s86, s86, 1")
def prof_out(E, opt, wslo, wavereg, base, n, extra=None):
    if not opt.get("prof"): return
    if opt.get("prof") == 7:
        E("s_mov_b64 exec, 0xffff")
        E(f"s_mov_b32 s96, s{wslo}")
        E(f"s_mov_b32 s97, s{wslo+1}")
        E(f"s_mov_b32 s98, {PROF_OFF + 0x200000}")
        E("s_mov_b32 s99, 0x20000")
        E("s_lshl_b32 s100, s2, 3")
        E(f"s_add_u32 s100, s100, s{wavereg}")
        E("s_lshl_b32 s100, s100, 6")
        E(f"s_add_u32 s100, s100, {PROF_OFF + base}")
        E(f"v_and_b32 v1, 15, v{TID}")
        E("v_lshlrev_b32 v1, 2, v1")
        E("buffer_store_dword v250, v1, s[96:99], s100 offen")
        return
    E("s_waitcnt vmcnt(0)")
    stamp(E, opt, n - 1)
    E("s_mov_b64 exec, 1")
    if opt.get("leak") is not None:
        i, j, lb, lm = opt["leak"]
        E(f"s_cmp_eq_u32 s{wavereg}, 4")
        E("s_cbranch_scc0 M_end")
        if i >= 100:
            E(f"s_sub_u32 s96, s{77+2*(i-100)}, s{77+2*j}")
            E("s_lshr_b32 s96, s96, 4")
        else:
            E(f"s_sub_u32 s96, s{76+2*i}, s{76+2*j}")
        E("s_min_u32 s96, s96, 10000")
        E(f"s_mul_i32 s96, s96, {lm}")
        E(f"s_add_u32 s96, s96, {lb}")
        E.label("M_leak")
        E("s_sleep 2")
        E("s_memrealtime s[98:99]")
        E("s_waitcnt lgkmcnt(0)")
        E("s_sub_u32 s98, s98, s76")
        E("s_cmp_lt_u32 s98, s96")
        E("s_cbranch_scc1 M_leak")
        return
    if opt.get("dbgout"):
        E(f"s_cmp_eq_u32 s{wavereg}, 4")
        E("s_cbranch_scc0 M_end")
        E("v_mov_b32 v1, 0")
        for q, i in enumerate((5, 6, 7)):
            E(f"v_mov_b32 v2, s{76+2*i}")
            E(f"buffer_atomic_umax v2, v1, s[4:7], 0 offen offset:{4+4*q} sc1")
        for q, i in enumerate((0,)):
            E(f"s_not_b32 s96, s{76+2*i}")
            E(f"v_mov_b32 v2, s96")
            E(f"buffer_atomic_umax v2, v1, s[4:7], 0 offen offset:{16+4*q} sc1")
        E("s_cmp_eq_u32 s2, 77")
        E("s_cbranch_scc0 M_end")
        for q, r in enumerate((76, 78, 80, 82, 84, 86, 88, 90, 87, 89, extra)):
            E(f"v_mov_b32 v2, s{r}")
            E(f"buffer_store_dword v2, v1, s[4:7], 0 offen offset:{20+4*q} sc1")
        return
    E(f"s_mov_b32 s96, s{wslo}")
    E(f"s_mov_b32 s97, s{wslo+1}")
    E(f"s_mov_b32 s98, {PROF_OFF + 0x200000}")
    E("s_mov_b32 s99, 0x20000")
    E("s_lshl_b32 s100, s2, 3")
    E(f"s_add_u32 s100, s100, s{wavereg}")
    E("s_lshl_b32 s100, s100, 6")
    E(f"s_add_u32 s100, s100, {PROF_OFF + base}")
    E("v_mov_b32 v1, 0")
    for i in range(n):
        E(f"v_mov_b32 v2, s{76+2*i}")
        E(f"buffer_store_dword v2, v1, s[96:99], s100 offen offset:{4*i}")
        if i < 7:
            E(f"v_mov_b32 v2, s{77+2*i}")
            E(f"buffer_store_dword v2, v1, s[96:99], s100 offen offset:{32+4*i}")
    if extra is not None:
        E(f"v_mov_b32 v2, s{extra}")
        E(f"buffer_store_dword v2, v1, s[96:99], s100 offen offset:60")

def vr(a, n=1):
    return f"v{a}" if n == 1 else f"v[{a}:{a+n-1}]"
def sr(a, n=1):
    return f"s{a}" if n == 1 else f"s[{a}:{a+n-1}]"
def rng(a, n):
    return list(range(a, a + n))

def srd(E, d, lo, hi, nrec, stride=0):
    E(f"s_mov_b32 s{d}, s{lo}")
    if stride:
        E(f"s_or_b32 s{d+1}, s{hi}, {stride << 16}")
    else:
        E(f"s_mov_b32 s{d+1}, s{hi}")
    E(f"s_mov_b32 s{d+2}, {nrec}")
    E(f"s_mov_b32 s{d+3}, 0x20000")

TZ = 0
TS = 2560
CNT = 5120
FLG = CNT + 4
WST = 5376
ER = 40192
XR = 56576
LIST = 122112
STG = ER
SSTR = 400
INV0 = 0xFFFF
LCAP = 640
K2_LDS = 163840
CEN0 = 280

WB = 0
WV = 32
WC = 64
XA = 72
ACC = 88
Z0 = 120
Z1 = 136
H = 152
X = 168
EE = 184
OH = 188
S = 196
MSG = 204
XP = 212
EPR = 220
DZ = 222
CZ = 223
DS = 224
CS = 228
XAD = 229
EAD = 233
LPX = 234
LPE = 235
LPZ = 236
LPS = 237
VT = 238
TID = 239
TMP = 240
K2_VGPR = 248

def wb(s, f): return WB + (s * 2 + f) * 4
def wv(s, f): return WV + (s * 2 + f) * 4
def wc(f): return WC + f * 4
SM = 1
def xa(s, f): return XA + (f * 2 + s) * 4 if SM else XA + (s * 2 + f) * 4
IDX = OH + 4
def smf(d, f): return f"v_smfmac_f32_32x32x32_bf16 {vr(d,16)}, {vr(OH,4)}, {vr(XA+8*f,8)}, v{IDX}"
def sm_idx(E):
    E(f"v_lshrrev_b32 v{IDX}, 4, v{DZ}")
    E(f"v_lshlrev_b16 v{IDX}, v{DZ}, v{IDX}")
def zb(f): return Z1 if f else Z0

def mfma(d, a, b, c):
    cs = "0" if c is None else vr(c, 16)
    return f"v_mfma_f32_32x32x16_bf16 {vr(d,16)}, {vr(a,4)}, {vr(b,4)}, {cs}"

S_X = 12
S_EP = 16
S_WS = 20
S_OUT = 24
S_WAVE = 28
S_G = 29
S_NT = 30
S_XR = 31
S_ER = 32
S_SLOW = 33
S_J = 34
S_MAX = 35
S_NODE = 36
S_LB = 37
S_T0 = 38
S_T1 = 39
S_MASK = 40
S_80 = 75
KINC = 87382
TMASK = 0xFFE0E0E0

EFLAGS = ""
EMASK = 0x1fffff
def dma_tile(E, slot, spacer=None):
    out = []
    out.append([f"s_add_u32 m0, s{S_ER}, {slot*1024}", "s_nop 0",
                f"buffer_load_dwordx4 {vr(EPR,2)}, s[{S_EP}:{S_EP+3}], 0 idxen offen {EFLAGS} lds"])
    for i in range(4):
        out.append([f"s_add_u32 m0, s{S_XR}, {slot*4096 + i*1024}", "s_nop 0",
                    f"buffer_load_dwordx4 {vr(XP+2*i,2)}, s[{S_X}:{S_X+3}], 0 idxen offen lds"])
    return out

def rd_list_dma(E, trel):
    E.ds(f"ds_read_b32 v{EPR}, v{LPE} offset:{trel*256}", [EPR])
    for i in range(4):
        E.ds(f"ds_read_u16 v{XP+2*i}, v{LPX} offset:{trel*256 + i*64}", [XP + 2 * i])

def rd_x(E, s, slot):
    E.ds(f"ds_read_b128 {vr(X+4*s,4)}, v{XAD+s} offset:{slot*4096}", rng(X + 4 * s, 4))
def rd_e(E, slot):
    E.ds(f"ds_read_b128 {vr(EE,4)}, v{EAD} offset:{slot*1024}", rng(EE, 4))
def rd_oh(E, s):
    E.ds(f"ds_read_b128 {vr(OH+4*s,4)}, v{DZ} offset:{s*32}", rng(OH + 4 * s, 4))
def rd_s(E, w):
    E.ds(f"ds_read_b64_tr_b16 {vr(S+2*w,2)}, v{DS+w}", rng(S + 2 * w, 2))
def rd_dz(E, trel):
    E.ds(f"ds_read_u16 v{DZ}, v{LPZ} offset:{trel*256}", [DZ])
def rd_ds(E, trel, w):
    E.ds(f"ds_read_u16 v{DS+w}, v{LPS} offset:{trel*256 + w*64}", [DS + w])

SH16 = {}
def acc0(E, opt):
    if opt.get("prof") == 6:
        E("s_memtime s[96:97]"); E.drain()
def acc1(E, opt, r):
    if opt.get("prof") == 6:
        E("s_memtime s[98:99]"); E.drain()
        E("s_sub_u32 s98, s98, s96")
        E(f"s_add_u32 s{r}, s{r}, s98")
def tile_body(E, par, opt):
    prio = opt.get("prio", True)
    def P(n):
        if prio: E(f"s_setprio {n}")
    def M(d, a, b, c):
        E.need(rng(a, 4)); E.need(rng(b, 4))
        if opt.get("halfx") and a in (X + 4, X + 12): return
        if opt.get("nox") and a in (X + 4, X + 8, X + 12): return
        if opt.get("nox") and a == X and d != H: return
        if opt.get("shape16"):
            st = SH16.setdefault(d, [0, 0])
            if c is None: st[0] = 0; st[1] = 2
            for q in range(2):
                blk = d + 4 * (2 * st[0] + q)
                bb = b if q == 0 else (b ^ 8 if b < 64 else b ^ 4)
                cs = "0" if st[1] > 0 else vr(blk, 4)
                E(f"v_mfma_f32_16x16x32_bf16 {vr(blk,4)}, {vr(a,4)}, {vr(bb,4)}, {cs}")
            st[0] ^= 1
            if st[1] > 0: st[1] -= 1
            return
        if opt.get("nooh") and a == OH + 4: return
        E(mfma(d, a, b, c))
    for f in (0, 1):
        z = zb(f); zn = zb(f ^ 1); fn = f ^ 1
        ex = [f"v_exp_f32 v{z+i}, v{z+i}" for i in range(16)]
        rc = [f"v_rcp_f32 v{z+i}, v{z+i}" for i in range(16)]
        if opt.get("notrans"):
            ex = [f"v_mov_b32 v{z+i}, v{z+i}" for i in range(16)]; rc = ex
        cv = [f"v_cvt_pk_bf16_f32 v{MSG+i}, v{H+2*i}, v{H+2*i+1}" for i in range(8)]
        E.c(f"---- slot f={f} par={par} T1")
        P(1)
        M(zn, EE, wc(fn), None)
        if f == 0:
            rd_dz(E, par + 1)
        else:
            for w in range(4): rd_ds(E, par + 1, w)
        for i in range(4): E(cv[i])
        E(ex[0])
        if SM == 1: E(smf(zn, fn))
        if SM == 0: M(zn, OH, xa(0, fn), zn)
        for i in range(4, 8): E(cv[i])
        E(ex[1])
        k = 2
        dpos = opt.get("dpos", 4)
        nd = opt.get("nodma", 0)
        def dgrp(slot, fillers, k, lo=0, hi=5):
            g = dma_tile(E, slot)
            acc0(E, opt)
            for q in range(lo, hi):
                E(g[q][0])
                if k < 16: E(fillers[k]); k += 1
                else: E("s_nop 0")
                if not (nd == 1 or (nd == 2 and q == 0) or (nd == 3 and q > 0)): E(g[q][2])
            acc1(E, opt, 78)
            return k
        if f == 1:
            acc0(E, opt)
            E("s_waitcnt vmcnt(%d)" % ({0:5,1:5,2:4,3:1}[nd] if dpos < 2 else {2: 0, 3: 1, 4: 0, 5: 0, 6: 0}[dpos]))
            acc1(E, opt, 80)
        for s in range(4):
            M(H, X + 4 * s, wv(s, f), None if s == 0 else H)
            if f == 1: rd_x(E, s, par ^ 1)
            if f == 1 and dpos == 5 and s == 0:
                g = dma_tile(E, par)
                E(g[0][0]); E(ex[k]); k += 1; E(g[0][2])
                for i in range(2): E(ex[k]); k += 1
            elif f == 1 and dpos in (2, 3):
                g = dma_tile(E, par)
                if s == 0 and dpos == 2:
                    E(g[0][0]); E(ex[k]); k += 1; E(g[0][2])
                E(g[s+1][0]); E(ex[k]); k += 1; E(g[s+1][2])
                while k < 5 + 3 * s: E(ex[k]); k += 1
            else:
                for i in range(3): E(ex[k]); k += 1
        M(ACC + 16 * fn, S, MSG, ACC + 16 * fn)
        E(ex[k]); E(ex[k + 1])
        M(ACC + 16 * fn, S + 4, MSG + 4, ACC + 16 * fn)
        if f == 0:
            for w in range(4): rd_s(E, w)
        E.c("P1")
        P(0)
        if opt.get("pk", 0) & 1:
            for i in range(8): E(f"v_pk_add_f32 {vr(z+2*i,2)}, {vr(z+2*i,2)}, 1.0 op_sel_hi:[1,0]")
        else:
            for i in range(16): E(f"v_add_f32 v{z+i}, 1.0, v{z+i}")
        if f == 0:
            E.need([DZ])
            if SM == 0: E(f"v_mad_u32_u24 v{DZ}, v{DZ}, s{S_80}, v{CZ}")
            if SM == 1: sm_idx(E)
        elif dpos == 0:
            E.need([EPR])
            E(f"v_and_b32 v{EPR}, {EMASK}, v{EPR}")
        E.c("T2")
        P(1)
        if SM == 2: E(smf(zn, fn))
        if SM == 0: M(zn, OH + 4, xa(1, fn), zn)
        if f == 0:
            acc0(E, opt)
            E("s_waitcnt vmcnt(%d)" % ({0:9,1:9,2:8,3:1}[nd] if dpos == 0 else 4))
            acc1(E, opt, 82)
            rd_e(E, par ^ 1)
            if SM == 0: rd_oh(E, 0); rd_oh(E, 1)
            if dpos == 0: rd_list_dma(E, par + 3)
            if dpos >= 4: rd_list_dma(E, par + 2)
        k = 0
        for i in range(3): E(rc[k]); k += 1
        if f == 1 and dpos == 6:
            g = dma_tile(E, par)
            E(g[0][0]); E(rc[k]); k += 1; E(g[0][2])
        for s in range(4):
            M(zn, X + 4 * s, wb(s, fn), zn)
            xm = opt.get("xm", 0)
            for q in range((xm + 7 - 2 * s - f) // 8):
                E(f"v_mfma_f32_16x16x32_bf16 v[{248 + 4 * (q & 1)}:{251 + 4 * (q & 1)}], {vr(X + 4 * s, 4)}, {vr(wv(s ^ q, f), 4)}, 0")
            if f == 1 and dpos in (5, 6):
                g = dma_tile(E, par)
                E(g[s+1][0]); E(rc[k]); k += 1; E(g[s+1][2])
                for i in range(2): E(rc[k]); k += 1
            elif s < 3:
                for i in range(3): E(rc[k]); k += 1
        if f == 1 and dpos == 4: k = dgrp(par, rc, k)
        if f == 1 and dpos == 0:
            assert not E.pend
            k = dgrp(par ^ 1, rc, k)
        if f == 0 and dpos == 1: k = dgrp(par, rc, k)
        if f == 0 and dpos == 3: k = dgrp(par, rc, k, 0, 1)
        if f == 1 and 0 < dpos < 4: rd_list_dma(E, par + 3)
        while k < 16: E(rc[k]); k += 1
        E.c("P2")
        P(0)
        if f == 0 and SM == 2: sm_idx(E)
        if f == 1:
            for w in range(4): E(f"v_mad_u32_u24 v{DS+w}, v{DS+w}, s{S_80}, v{CS}")
            if par == 1:
                for r in (LPX, LPE, LPZ, LPS): E(f"v_add_u32 v{r}, 512, v{r}")
        if opt.get("pk", 0) & 2:
            for i in range(8): E(f"v_pk_mul_f32 {vr(H+2*i,2)}, {vr(H+2*i,2)}, {vr(z+2*i,2)}")
        else:
            for i in range(16): E(f"v_mul_f32 v{H+i}, v{H+i}, v{z+i}")
        if f == 0 and dpos >= 4:
            E.need([EPR])
        if f == 1 and 0 < dpos < 4:
            E.drain()
            E(f"v_and_b32 v{EPR}, {EMASK}, v{EPR}")
    assert not E.pend


SD = "dst_sel:DWORD dst_unused:UNUSED_PAD src0_sel:DWORD"
S_INIT = 3
class Vm:
    def __init__(self, E): self.E = E; self.q = []
    def __call__(self, s, tag): self.E(s); self.q.append(tag)
    def wait(self, tag):
        last = max(i for i, t in enumerate(self.q) if t == tag)
        self.E(f"s_waitcnt vmcnt({len(self.q) - 1 - last})")

def gen_k(E, opt):
    st = opt.get("st", "sc1")
    ld = opt.get("ld", "sc1")
    thr = opt.get("thr")
    V = Vm(E)
    E.label(NAME + "_kernel")
    E("s_cmp_ge_u32 s2, 256")
    E("s_cbranch_scc1 M_end")
    stamp(E, opt, 0, 1); stamp(E, opt, 0, 3); stamp(E, opt, 0, 4); stamp(E, opt, 0, 5)
    E("s_load_dwordx16 s[40:55], s[0:1], 0")
    E("s_load_dwordx4 s[56:59], s[0:1], 64")
    E(f"v_mov_b32 v{TID}, v0")
    E(f"v_lshrrev_b32 v{TMP}, 6, v0")
    E("s_and_b32 s10, s2, 7")
    E("s_lshr_b32 s11, s2, 3")
    E(f"v_readfirstlane_b32 s{S_WAVE}, v{TMP}")
    E(f"s_and_b32 s{S_J}, s11, 0x18")
    E(f"s_add_u32 s{S_J}, s{S_J}, s10")
    E(f"s_lshl_b32 s{S_J}, s{S_J}, 3")
    E("s_and_b32 s11, s11, 7")
    E(f"s_add_u32 s{S_J}, s{S_J}, s11")
    E(f"s_mul_i32 s72, s{S_J}, {CH*4}")
    E(f"s_add_u32 s73, s72, {CH*4}")
    E(f"s_min_u32 s73, s73, {N_EDGES*4}")
    E("s_add_u32 s74, s72, 8192")
    E("s_add_u32 s75, s72, 12288")
    L = TMP + 1
    T16, T8, T4 = 130, 131, 132
    E(f"v_lshlrev_b32 v{T16}, 4, v0")
    E(f"v_lshlrev_b32 v{T8}, 3, v0")
    E(f"v_lshlrev_b32 v{T4}, 2, v0")
    E(f"v_and_b32 v{L}, 63, v0")
    m, h, h16 = TMP + 2, TMP + 3, 133
    t6, t7 = TMP + 6, TMP + 7
    PA = TMP + 4
    WA = TMP + 5
    E(f"v_mov_b32 v134, 4")
    E(f"v_mov_b32 v136, {INV0}")
    E(f"v_mov_b32 v137, {INV0}")
    E(f"v_mov_b32 v138, {INV0}")
    E("v_mov_b32 v139, 0")
    E(f"v_lshrrev_b32 v128, 4, v0")
    E(f"v_mul_u32_u24 v128, {SSTR - 256}, v128")
    E(f"v_add_u32 v128, v128, v{T16}")
    E(f"v_add_u32 v135, {STG + 64*SSTR}, v128")
    E(f"s_lshl_b32 s{S_T0}, s{S_WAVE}, 11")
    E(f"s_and_b32 s{S_T1}, s{S_T0}, 0x1800")
    E("s_waitcnt lgkmcnt(0)")
    srd(E, 60, 46, 47, "s73")
    D1, S1 = 88, 96
    srcl = opt.get("srcl", 0)
    def ldidx(R, sr_, tag):
        V(f"buffer_load_dwordx4 v[{R}:{R+3}], v{T16}, s[{sr_}:{sr_+3}], s72 offen", tag)
        V(f"buffer_load_dwordx2 v[{R+4}:{R+5}], v{T8}, s[{sr_}:{sr_+3}], s74 offen", tag)
        V(f"buffer_load_dword v{R+6}, v{T4}, s[{sr_}:{sr_+3}], s75 offen", tag)
    ldidx(D1, 60, "dst")
    srd(E, 64, 44, 45, "s73")
    if srcl == 0: ldidx(S1, 64, "src")
    srd(E, S_WS, 58, 59, WS_USE)
    V(f"buffer_load_dword v{VT}, v134, s[{S_WS}:{S_WS+3}], 0 offen", "ep")
    stamp(E, opt, 1, 3)
    E(f"ds_write_b32 v{T4}, v139 offset:{TZ}")
    for k in range(8):
        E(f"ds_write_b128 v{128 if k < 2 else 135}, v[136:139] offset:{STG + k*32*SSTR if k < 2 else (k-2)*32*SSTR}")
    if srcl == 1: ldidx(S1, 64, "src")
    srd(E, 4, 52, 53, 18432)
    E(f"s_cmp_lt_u32 s{S_WAVE}, 4")
    E("s_cselect_b32 s68, s50, s48")
    E("s_cselect_b32 s69, s51, s49")
    E("s_mov_b32 s70, 8192")
    E("s_mov_b32 s71, 0x20000")
    E(f"v_lshlrev_b32 v{PA}, 4, v{L}")
    E("s_waitcnt lgkmcnt(0)")
    stamp(E, opt, 2, 3)
    E("s_barrier")
    if srcl == 2: ldidx(S1, 64, "src")
    def wdma(srdr, so, lo, lreg=None, tr=True):
        for k in range(2):
            if lreg is None: E(f"s_mov_b32 m0, {WST + lo + k*1024}")
            else: E(f"s_add_u32 m0, s{lreg}, {WST + lo + k*1024}")
            if k: E(f"s_add_u32 s{so}, s{so}, 1024")
            else: E("s_nop 0")
            s_ = f"buffer_load_dwordx4 v{PA}, s[{srdr}:{srdr+3}], s{so} offen lds"
            if tr: V(s_, "w")
            else: E(s_)
    JC = opt.get("jc", 0)
    E(f"s_cmp_eq_u32 s{S_WAVE}, {JC}")
    E(f"s_cbranch_scc0 M_nojc0")
    E(f"s_mov_b32 s10, {8*2048}")
    wdma(4, 10, 16 * 1024, None, False)
    E.label("M_nojc0")
    E(f"s_lshl_b32 s10, s{S_WAVE}, 11")
    wdma(4, S_T0, 0, 10)
    wdma(68, S_T1, 18 * 1024, 10)
    stamp(E, opt, 3, 3)
    srd(E, S_X, 40, 41, N_NODES, 128)
    if thr: srd(E, S_EP, 42, 43, N_EDGES, 32)
    else:
        E(f"s_lshl_b32 s10, s{S_WAVE}, 18")
        E(f"s_sub_u32 s{S_EP}, s42, s10")
        E(f"s_subb_u32 s{S_EP+1}, s43, 0")
        E(f"s_or_b32 s{S_EP+1}, s{S_EP+1}, {32 << 16}")
        E(f"s_lshr_b32 s10, s10, 5")
        E(f"s_add_u32 s{S_EP+2}, s10, {N_EDGES}")
        E(f"s_mov_b32 s{S_EP+3}, 0x20000")
    srd(E, S_OUT, 54, 55, N_NODES * 128)
    srd(E, 4, 56, 57, 256)
    E(f"s_lshl_b32 s{S_XR}, s{S_WAVE}, 13")
    E(f"s_add_u32 s{S_XR}, s{S_XR}, {XR}")
    E(f"s_lshl_b32 s{S_ER}, s{S_WAVE}, 11")
    E(f"s_add_u32 s{S_ER}, s{S_ER}, {ER}")
    E(f"s_mov_b32 s{S_SLOW}, 0")
    E(f"s_mov_b32 s{S_INIT}, 0")
    E(f"s_lshl_b32 s{S_NODE}, s{S_WAVE}, 8")
    E(f"s_add_u32 s{S_NODE}, s{S_NODE}, s2")
    E(f"v_and_b32 v{m}, 31, v{TID}")
    E(f"v_lshrrev_b32 v{h}, 5, v{L}")
    E(f"v_lshlrev_b32 v{h16}, 4, v{h}")
    W1, Q, RT, TT = 104, 112, 120, 140
    E("s_sub_u32 s73, s73, s72")
    E(f"v_cmp_gt_u32 s[40:41], s73, v{T16}")
    E(f"v_add_u32 v{T8}, 8192, v{T8}")
    E(f"v_add_u32 v134, 12288, v{T4}")
    E(f"v_cmp_gt_u32 s[42:43], s73, v{T8}")
    E(f"v_cmp_gt_u32 s[44:45], s73, v134")
    E(f"s_mov_b32 s46, {SSTR}")
    if thr: E(f"s_mov_b32 s47, 0")
    else:
        E(f"s_andn2_b32 s47, 4, s{S_J}")
        E(f"s_lshl_b32 s47, s47, 26")
    E(f"s_mov_b32 s48, {1 << 28}")
    E(f"s_mov_b32 s50, {64 << 16}")
    E(f"s_mov_b32 s51, {STG}")
    E(f"v_mov_b32 v135, {KINC}")
    E(f"v_lshl_add_u32 v{W1}, v{T4}, 16, s47")
    for j in range(1, 4): E(f"v_add_u32 v{W1+j}, {j << 16}, v{W1}")
    E(f"v_lshl_add_u32 v{W1+4}, v{T8}, 14, s47")
    E(f"v_add_u32 v{W1+5}, {1 << 16}, v{W1+4}")
    E(f"v_lshl_add_u32 v{W1+6}, v134, 14, s47")
    CA0, CA1, CC0, CG = 148, 149, 150, 147
    E(f"v_lshrrev_b32 v{CC0}, 3, v{TID}")
    E(f"v_and_b32 v{CA0}, 7, v{TID}")
    E(f"v_and_b32 v129, {8 - opt.get('gran', 2)}, v{TID}")
    E(f"v_lshlrev_b32 v129, 18, v129")
    E(f"v_lshlrev_b32 v{CA0}, 4, v{CA0}")
    KST = 0x200000
    E(f"v_lshl_add_u32 v{CG}, v{CC0}, 15, v{CA0}")
    E(f"v_mul_u32_u24 v{CA1}, {SSTR}, v{CC0}")
    E(f"v_lshlrev_b32 v{CC0}, 2, v{CC0}")
    E(f"v_add3_u32 v{CA0}, v{CA0}, v{CA1}, s51")
    E(f"v_add_u32 v{CA1}, {128*SSTR}, v{CA0}")
    E(f"s_lshl_b32 s74, s{S_J}, 7")
    E(f"s_add_u32 s74, s74, {SL_OFF}")
    E(f"s_mov_b32 s51, {32 << 16}")
    E(f"v_and_b32 v{t6}, 7, v{L}")
    E(f"v_lshrrev_b32 v{t7}, 4, v{L}")
    E(f"v_xor_b32 v{t6}, v{t6}, v{t7}")
    E(f"v_lshlrev_b32 v{XP+1}, 4, v{t6}")
    E(f"v_xor_b32 v{XP+3}, 64, v{XP+1}")
    E(f"v_mov_b32 v{XP+5}, v{XP+1}")
    E(f"v_mov_b32 v{XP+7}, v{XP+3}")
    E(f"v_and_b32 v{t6}, 1, v{t6}")
    E(f"v_lshlrev_b32 v{EPR+1}, 4, v{t6}")
    E(f"v_and_b32 v{t7}, 0x18, v{L}")
    E(f"s_sub_u32 s10, s{S_NODE}, {7*2048}")
    E(f"v_lshl_add_u32 v{t7}, v{h}, 2, v{t7}")
    E(f"v_lshl_add_u32 v{XP}, v{t7}, 11, s10")
    for i in range(1, 4): E(f"v_add_u32 v{XP+2*i}, {(2*(i&1) + (i>>1))*2048}, v{XP}")
    E(f"v_lshrrev_b32 v{t6}, 1, v{m}")
    E(f"v_and_b32 v{t6}, 7, v{t6}")
    E(f"v_xor_b32 v{t6}, v{t6}, v{h}")
    E(f"v_lshlrev_b32 v{t7}, 7, v{m}")
    E(f"v_add_u32 v{t7}, s{S_XR}, v{t7}")
    for s in range(4):
        E(f"v_xor_b32 v{XAD+s}, {2*s}, v{t6}")
        E(f"v_lshl_add_u32 v{XAD+s}, v{XAD+s}, 4, v{t7}")
    E(f"v_lshrrev_b32 v{t6}, 3, v{m}")
    E(f"v_and_b32 v{t6}, 1, v{t6}")
    E(f"v_xor_b32 v{t6}, v{t6}, v{h}")
    E(f"v_lshlrev_b32 v{t7}, 5, v{m}")
    E(f"v_add_u32 v{t7}, s{S_ER}, v{t7}")
    E(f"v_lshl_add_u32 v{EAD}, v{t6}, 4, v{t7}")
    E(f"v_mov_b32 v{CZ}, 0x3f80")
    E(f"v_lshlrev_b32 v{CZ}, v{h16}, v{CZ}")
    E(f"v_and_b32 v{t6}, 16, v{L}")
    E(f"v_lshlrev_b32 v{t6}, 1, v{t6}")
    E(f"v_and_b32 v{t7}, 3, v{L}")
    E(f"v_lshl_add_u32 v{t6}, v{t7}, 3, v{t6}")
    E(f"v_add_u32 v{CS}, {TS}, v{t6}")
    E(f"v_add_u32 v{WA}, {WST}, v{PA}")
    E(f"v_lshlrev_b32 v57, 2, v{m}")
    E(f"v_lshl_add_u32 v57, v{h}, 10, v57")
    E(f"s_lshl_b32 s10, s{S_WAVE}, 11")
    E(f"s_add_u32 s10, s10, {WST}")
    E(f"v_add_u32 v58, s10, v57")
    E(f"v_add_u32 v56, s10, v{PA}")
    VBU, SEL, DX = X, X + 4, X + 8
    INC = TMP + 3
    E(f"s_lshl_b32 s64, s2, 15")
    E(f"s_lshl_b32 s10, s{S_WAVE}, 12")
    E(f"s_add_u32 s64, s64, s10")
    E(f"s_add_u32 s64, s64, {SL_OFF}")
    for u in range(1, 4): E(f"s_add_u32 s{64+u}, s64, {u*1024}")
    E(f"v_lshrrev_b32 v{VBU}, 3, v{L}")
    E(f"s_lshl_b32 s10, s{S_WAVE}, 5")
    E(f"v_add_u32 v{VBU}, s10, v{VBU}")
    E(f"v_mul_u32_u24 v{VBU}, {CH}, v{VBU}")
    if not thr:
        E(f"v_lshl_add_u32 v{VBU}, v{h}, 12, v{VBU}")
        E(f"v_subrev_u32 v{VBU}, 4096, v{VBU}")
    for u in range(1, 4): E(f"v_add_u32 v{VBU+u}, {u*8*CH}, v{VBU}")
    for j in range(3): E(f"v_mov_b32 v{SEL+j}, {0x0c040100 + (j << 16)}")
    E(f"v_mov_b32 v{SEL+3}, 0x0e0e0e")
    E(f"v_add_u32 v{INC}, -8, v{h16}")
    def reset_cnt(cen, R):
        E(f"v_and_b32 v{R}, 15, v{TID}")
        E(f"v_lshrrev_b32 v{R+2}, 1, v{R}")
        E(f"v_mul_u32_u24 v{R+2}, {LCAP*8 + 16}, v{R+2}")
        E(f"v_mov_b32 v{R+3}, 0")
        E(f"v_lshlrev_b32 v{R+1}, 3, v{R}")
        E(f"v_add_u32 v{R+2}, {LIST + cen*8}, v{R+2}")
        E(f"v_lshlrev_b32 v{R}, 4, v{R}")
        E(f"v_sub_u32 v{R+2}, v{R+2}, v{R+1}")
        E(f"ds_write_b64 v{R}, {vr(R+2,2)} offset:{CNT}")
    TB = 0
    E(f"s_cmp_eq_u32 s{S_WAVE}, 6")
    E("s_cbranch_scc0 M_nocnt")
    reset_cnt(opt.get('cen', CEN0), TB)
    E.label("M_nocnt")
    E(f"s_cmp_eq_u32 s{S_WAVE}, 7")
    E("s_cbranch_scc0 M_notab")
    for i in range(4): E(f"v_mov_b32 v{TB+i}, 0")
    for k in range(2, 5):
        E(f"ds_write_b128 v{PA}, {vr(TB,4)} offset:{TZ + k*1024}")
    E(f"v_bfrev_b32 v{TB+4}, v{m}")
    E(f"v_lshrrev_b32 v{TB+5}, 3, v{m}")
    E(f"v_lshrrev_b32 v{TB+4}, 27, v{TB+4}")
    E(f"v_mul_u32_u24 v{TB+6}, 80, v{m}")
    E(f"v_and_or_b32 v{TB+4}, v{TB+4}, 28, v{TB+5}")
    E(f"v_mov_b32 v{TB+7}, 0x3f80")
    E(f"v_lshl_add_u32 v{TB+6}, v{TB+4}, 1, v{TB+6}")
    E("s_mov_b32 exec_lo, 0xffffff80")
    E("s_mov_b32 exec_hi, 0")
    E(f"ds_write_b16 v{TB+6}, v{TB+7} offset:{TS}")
    E("s_mov_b64 exec, -1")
    E.label("M_notab")
    E("s_waitcnt lgkmcnt(0)")
    V.wait("dst")
    stamp(E, opt, 1, 1); stamp(E, opt, 4, 3)
    groups = [(44, range(6, 7)), (42, range(4, 6)), (40, range(0, 4))]
    for gi, (sm, js) in enumerate(groups):
        E(f"s_mov_b64 exec, s[{sm}:{sm+1}]")
        for j in js: E(f"v_lshlrev_b32_sdwa v{Q+j}, 2, v{D1+j} {SD} src1_sel:BYTE_0")
        for j in js: E(f"ds_add_rtn_u32 v{RT+j}, v{Q+j}, v135 offset:{TZ}")
    for j in range(7): E(f"v_mul_u32_u24_sdwa v{Q+j}, s46, v{D1+j} {SD} src1_sel:BYTE_0")
    for j in range(7): E(f"v_lshlrev_b32_sdwa v{TT+j}, 29, v{D1+j} {SD} src1_sel:BYTE_1")
    for j in range(7): E(f"v_lshrrev_b32 v{D1+j}, 11, v{D1+j}")
    order = [6, 4, 5, 0, 1, 2, 3]
    for n_, j in enumerate(order):
        E(f"s_waitcnt lgkmcnt({6 - n_})")
        E(f"v_min_u32 v{RT+j}, s50, v{RT+j}")
        E(f"v_mad_u32_u16 v{Q+j}, v{RT+j}, 4, v{Q+j} op_sel:[1,0,0,0]")
        E(f"v_bfe_u32 v{RT+j}, v{RT+j}, 16, 2")
        E(f"v_mad_i32_i24 v{RT+j}, v{RT+j}, -3, v{Q+j}")
    for gi, (sm, js) in enumerate(groups[::-1]):
        if gi: E(f"s_mov_b64 exec, s[{sm}:{sm+1}]")
        for j in js: E(f"ds_write_b8 v{RT+j}, v{D1+j} offset:{STG+12}")
    V.wait("src")
    for gi, (sm, js) in enumerate(groups):
        if gi: E(f"s_mov_b64 exec, s[{sm}:{sm+1}]")
        for j in js:
            if thr:
                E(f"v_subrev_u32 v{D1+j}, {thr}, v{S1+j}")
                E(f"v_and_or_b32 v{TT+j}, v{D1+j}, s48, v{TT+j}")
            E(f"v_or3_b32 v{W1+j}, v{W1+j}, v{TT+j}, v{S1+j}")
            E(f"ds_write_b32 v{Q+j}, v{W1+j} offset:{STG}")
    E("s_mov_b64 exec, -1")
    if srcl == 0: V.wait("ep")
    S_TAG, S_TM = 72, 73
    E(f"v_readfirstlane_b32 s{S_TAG}, v{VT}")
    E(f"s_mov_b32 s{S_TM}, {TMASK}")
    E(f"s_orn2_b32 s{S_TAG}, s{S_TAG}, s{S_TM}")
    E(f"s_add_u32 s{S_TAG}, s{S_TAG}, 1")
    E(f"s_and_b32 s{S_TAG}, s{S_TAG}, s{S_TM}")
    E("s_waitcnt lgkmcnt(0)")
    stamp(E, opt, 5, 3)
    E("s_barrier")
    stamp(E, opt, 2, 1)
    CD = 88
    for k in range(4):
        E(f"ds_read_b32 v{120+k}, v{CC0} offset:{TZ + k*256}")
        E(f"ds_read_b128 {vr(CD+4*k,4)}, v{CA0 if k < 2 else CA1} offset:{(k&1)*64*SSTR}")
    for k in range(4):
        E(f"s_waitcnt lgkmcnt({6-2*k})")
        E(f"v_cmp_le_u32 vcc, v129, v{120+k}")
        E(f"v_or_b32 v{CD+4*k+3}, s{S_TAG}, v{CD+4*k+3}")
        E(f"s_add_u32 s75, s74, {k*KST}")
        E("s_mov_b64 exec, vcc")
        E(f"buffer_store_dwordx4 {vr(CD+4*k,4)}, v{CG}, s[{S_WS}:{S_WS+3}], s75 offen {st}")
        E("s_mov_b64 exec, -1")
    E(f"v_max_u32 v120, v120, v121")
    E(f"v_max3_u32 v124, v120, v122, v123")
    E(f"v_cmp_le_u32 vcc, s51, v124")
    E("s_cbranch_vccz M_no2")
    E("s_mov_b64 exec, vcc")
    for k in range(4):
        E(f"ds_read_b128 {vr(CD+16+4*k,4)}, v{CA0 if k < 2 else CA1} offset:{(k&1)*64*SSTR + 128}")
    E("s_waitcnt lgkmcnt(0)")
    for k in range(4):
        E(f"v_or_b32 v{CD+16+4*k+3}, s{S_TAG}, v{CD+16+4*k+3}")
        E(f"s_add_u32 s75, s74, {k*KST + SL_LINE}")
        E(f"buffer_store_dwordx4 {vr(CD+16+4*k,4)}, v{CG}, s[{S_WS}:{S_WS+3}], s75 offen {st}")
    E("s_mov_b64 exec, -1")
    stamp(E, opt, 3, 1)
    E("s_waitcnt vmcnt(8)")
    E("s_branch M_no2b")
    E.label("M_no2")
    stamp(E, opt, 3, 1)
    E("s_waitcnt vmcnt(4)")
    E.label("M_no2b")
    stamp(E, opt, 1, 4)
    def poll_ld(u):
        E(f"buffer_load_dwordx4 {vr(H+4*u,4)}, v{PA}, s[{S_WS}:{S_WS+3}], s{64+u} offen {ld}")
    for j in range(8): E(f"ds_read_b32 v{j}, v58 offset:{j*128}")
    for j in range(7): E(f"ds_read_b32 v{8+j}, v58 offset:{18*1024 + j*128}")
    E(f"s_cmp_lt_u32 s{S_WAVE}, 4")
    E(f"s_cselect_b32 s10, 1.0, {NLOG2E}")
    for u in range(4):
        E(f"s_mov_b64 s[{40+2*u}:{41+2*u}], -1")
    E(f"s_mov_b32 s{S_T1}, {LIST}")
    E(f"s_mov_b32 s{S_MAX}, 0")
    E(f"s_mov_b32 s{S_T0}, 0xf0")
    E("s_waitcnt lgkmcnt(7)")
    E(f"ds_read_b32 v15, v58 offset:{18*1024 + 7*128}")
    def scaled(R, sc, addr, off):
        for j in range(8):
            E(f"v_lshlrev_b32 v{24+j}, 16, v{R+j}")
            E(f"v_and_b32 v{R+j}, 0xffff0000, v{R+j}")
        for j in range(8):
            E(f"v_mul_f32 v{24+j}, s{sc}, v{24+j}")
            E(f"v_mul_f32 v{R+j}, s{sc}, v{R+j}")
        for j in range(4):
            E(f"v_cvt_pk_bf16_f32 v{32+j}, v{24+2*j}, v{25+2*j}")
            E(f"v_cvt_pk_bf16_f32 v{36+j}, v{R+2*j}, v{R+1+2*j}")
        E(f"ds_write_b128 v{addr}, v[32:35] offset:{off}")
        E(f"ds_write_b128 v{addr}, v[36:39] offset:{off+1024}")
    scaled(0, 10, 56, 0)
    E("s_mov_b32 s10, 0x05040100")
    E("s_mov_b32 s11, 0x07060302")
    E("s_waitcnt lgkmcnt(2)")
    for j in range(4):
        E(f"v_perm_b32 v{40+j}, v{9+2*j}, v{8+2*j}, s10")
        E(f"v_perm_b32 v{44+j}, v{9+2*j}, v{8+2*j}, s11")
    E(f"ds_write_b128 v56, v[40:43] offset:{18*1024}")
    E(f"ds_write_b128 v56, v[44:47] offset:{19*1024}")
    E(f"s_cmp_eq_u32 s{S_WAVE}, {JC}")
    E("s_cbranch_scc0 M_nojc")
    for j in range(8): E(f"ds_read_b32 v{16+j}, v57 offset:{WST + 16*1024 + j*128}")
    E(f"s_mov_b32 s10, {NLOG2E}")
    E("s_waitcnt lgkmcnt(0)")
    scaled(16, 10, WA, 16 * 1024)
    E.label("M_nojc")
    E("s_waitcnt lgkmcnt(0)")
    E("s_barrier")
    stamp(E, opt, 2, 4)
    xo = opt.get("xo", 0)
    def xown():
        for g in dma_tile(E, 1)[1:]:
            for i in g: E(i)
    pp = opt.get("pp", 0)
    if xo == 1: xown()
    if pp == 0:
        for u in range(4): poll_ld(u)
    if xo == 0: xown()
    stamp(E, opt, 4, 1); stamp(E, opt, 3, 4); stamp(E, opt, 1, 5)
    for i in range(8):
        E.ds(f"ds_read_b128 {vr(WB+4*i,4)}, v{WA} offset:{i*1024}", rng(WB + 4 * i, 4))
    for i in range(2):
        E.ds(f"ds_read_b128 {vr(WC+4*i,4)}, v{WA} offset:{(16+i)*1024}", rng(WC + 4 * i, 4))
    E.need(rng(WB, 16))
    for i in range(8):
        E.ds(f"ds_read_b128 {vr(WV+4*i,4)}, v{WA} offset:{(26+i)*1024}", rng(WV + 4 * i, 4))
    E.drain()
    if pp == 1:
        for u in range(4): poll_ld(u)
    R = EE
    MK = [48, 50, 52, 54, 56, 58, 60, 62, 68, 70, 8, 74]
    if xo == 0:
        E(f"s_waitcnt vmcnt(4)")
        E("s_branch M_poll1")
    if xo == 2:
        E(f"s_waitcnt vmcnt(0)")
        xown()
        E("s_branch M_poll1")
    E.label("M_poll")
    E("s_waitcnt vmcnt(0)")
    E.label("M_poll1")
    stamp(E, opt, 4, 4); stamp(E, opt, 2, 5)
    for k in MK: E(f"s_mov_b64 s[{k}:{k+1}], 0")
    for u in range(4):
        sm = 40 + 2 * u; mk = MK[3*u:3*u+3]; A = H + 4 * u
        E(f"s_mov_b64 exec, s[{sm}:{sm+1}]")
        E(f"s_cbranch_execz M_pu{u}")
        E(f"v_xor_b32 v{DX}, s{S_TAG}, v{A+3}")
        E(f"v_cmp_ne_u16 s[{mk[2]}:{mk[2]+1}], -1, v{A+2}")
        E(f"v_and_b32 v{DX+1}, s{S_TM}, v{DX}")
        E(f"v_cmp_eq_u32 vcc, 0, v{DX+1}")
        for j in range(3): E(f"v_and_b32_sdwa v{Z1+3*u+j}, s{S_T0}, v{A+j} {SD} src1_sel:BYTE_3")
        E(f"s_and_b64 s[{mk[2]}:{mk[2]+1}], s[{mk[2]}:{mk[2]+1}], vcc")
        E(f"s_and_b32 s{mk[0]}, s{mk[2]}, 0x7f7f7f7f")
        E(f"s_and_b32 s{mk[0]+1}, s{mk[2]+1}, 0x7f7f7f7f")
        E(f"s_add_u32 s10, s{mk[0]}, 0x01010101")
        E(f"s_add_u32 s11, s{mk[0]+1}, 0x01010101")
        E(f"s_xor_b64 s[10:11], s[10:11], s[{mk[0]}:{mk[0]+1}]")
        E(f"s_and_b64 s[10:11], s[10:11], exec")
        E(f"s_and_b64 s[{mk[2]}:{mk[2]+1}], s[{mk[2]}:{mk[2]+1}], s[10:11]")
        E(f"s_andn2_b64 vcc, s[10:11], vcc")
        E(f"s_cselect_b64 s[{mk[2]}:{mk[2]+1}], 0, s[{mk[2]}:{mk[2]+1}]")
        E(f"s_mov_b64 s[{mk[0]}:{mk[0]+1}], 0")
        E(f"s_cbranch_scc1 M_pl{u}")
        E(f"s_mov_b64 exec, s[10:11]")
        E(f"v_cmp_ne_u16 s[{mk[0]}:{mk[0]+1}], -1, v{A}")
        E(f"v_cmp_ne_u16 s[{mk[1]}:{mk[1]+1}], -1, v{A+1}")
        E(f"v_lshl_add_u32 v{DX}, v{DX}, 1, v{SEL+3}")
        E(f"s_lshr_b64 s[{sm}:{sm+1}], s[{mk[2]}:{mk[2]+1}], 7")
        if thr:
            for j in range(3):
                E(f"v_bfe_i32 v{Z0+j}, v{A+j}, 28, 1")
                E(f"v_lshl_add_u32 v{Z0+j}, v{Z0+j}, 4, 8")
        for j in (2, 0, 1):
            i = 3 * u + j
            E(f"s_mov_b64 exec, s[{mk[j]}:{mk[j]+1}]")
            E(f"ds_add_rtn_u32 v{Z1+i}, v{Z1+i}, v{Z0+j if thr else INC} offset:{CNT}")
            E(f"v_perm_b32 v{R+2*i}, v{DX}, v{A+j}, v{SEL+j}")
            if thr:
                E(f"v_bfe_u32 v{R+2*i+1}, v{A+j}, 16, 12")
                E(f"v_add_u32 v{R+2*i+1}, v{R+2*i+1}, v{VBU+u}")
            else:
                E(f"v_add_u32_sdwa v{R+2*i+1}, v{VBU+u}, v{A+j} {SD} src1_sel:WORD_1")
        E(f"s_and_b32 s{sm}, s{sm}, 0x01010101")
        E(f"s_and_b32 s{sm+1}, s{sm+1}, 0x01010101")
        E(f"s_mul_i32 s{sm}, s{sm}, 0xff")
        E(f"s_mul_i32 s{sm+1}, s{sm+1}, 0xff")
        E(f"s_add_u32 s{64+u}, s{64+u}, {SL_LINE}")
        E(f"s_mov_b64 exec, s[{sm}:{sm+1}]")
        E(f"s_cbranch_execz M_pu{u}")
        E(f"s_cmp_lt_u32 s{64+u}, {WS_USE}")
        E(f"s_cbranch_scc0 M_giveup")
        E.label(f"M_pl{u}")
        poll_ld(u)
        E.label(f"M_pu{u}")
    E("s_waitcnt lgkmcnt(0)")
    stamp(E, opt, 3, 5)
    E("s_mov_b64 exec, -1")
    for j in range(12): E(f"v_max_i32 v{Z1+j}, s{S_T1}, v{Z1+j}")
    for j in range(12):
        E(f"s_mov_b64 exec, s[{MK[j]}:{MK[j]+1}]")
        E(f"ds_write_b64 v{Z1+j}, {vr(R+2*j,2)}")
    E("s_or_b64 s[10:11], s[40:41], s[42:43]")
    E("s_or_b64 s[48:49], s[44:45], s[46:47]")
    E(f"s_add_u32 s{S_MAX}, s{S_MAX}, 1")
    E("s_or_b64 s[10:11], s[10:11], s[48:49]")
    E("s_cbranch_scc0 M_routed")
    E(f"s_cmp_lt_u32 s{S_MAX}, {opt.get('tmo', 4000)}")
    E("s_cbranch_scc1 M_poll")
    E.label("M_giveup")
    E("s_mov_b64 exec, -1")
    E(f"v_mov_b32 v{Z0}, 0")
    E(f"ds_write_b32 v{Z0}, v{INC} offset:{FLG}")
    E("s_waitcnt vmcnt(0)")
    E.label("M_routed")
    E("s_mov_b64 exec, -1")
    if xo == 3: xown()
    E(f"s_add_u32 s10, s{S_WAVE}, 254")
    E(f"v_mov_b32 v{VT}, s10")
    E(f"s_mov_b32 s{S_T0}, s{S_TAG}")
    E(f"v_and_b32 v{Z0}, 7, v{TID}")
    E(f"v_lshlrev_b32 v{Z0+1}, 5, v{Z0}")
    E(f"v_add_u32 v{Z0+1}, {CNT}, v{Z0+1}")
    E("s_waitcnt lgkmcnt(0)")
    stamp(E, opt, 4, 5)
    E("s_barrier")
    stamp(E, opt, 5, 5)
    stamp(E, opt, 5, 1); stamp(E, opt, 0, 2); stamp(E, opt, 5, 4); stamp(E, opt, 0, 8)
    if opt.get("prof") == 7:
        E("v_mov_b32 v250, 0"); E("s_mov_b32 s86, 0"); tstamp(E, opt)
    E.label("M_entry")
    E(f"ds_read2_b32 {vr(Z0+2,2)}, v{Z0+1} offset1:4")
    E(f"ds_read_b32 v{Z0+9}, v{Z0+1} offset:4")
    E(f"v_and_b32 v{LPX}, 0x38, v{L}")
    E(f"v_lshrrev_b32 v{LPE}, 1, v{L}")
    E(f"v_lshlrev_b32 v{LPE}, 3, v{LPE}")
    E(f"v_and_b32 v{LPZ}, 31, v{L}")
    E(f"v_lshlrev_b32 v{LPZ}, 3, v{LPZ}")
    E(f"v_and_b32 v{LPS}, 12, v{L}")
    E(f"v_lshlrev_b32 v{LPS}, 1, v{LPS}")
    E(f"v_and_b32 v{Z0+4}, 32, v{L}")
    E(f"v_mov_b32 v{Z0+6}, 0xffff")
    E(f"s_mov_b32 s{S_80}, 40")
    E(f"v_mov_b32 v{Z0+7}, 0x100000")
    E(f"v_lshlrev_b32 v{Z0+5}, 3, v{L}")
    E(f"v_mov_b32 v{Z0+8}, {LIST - 1024}")
    E(f"s_mov_b32 s11, {K2_LDS - 1024}")
    E("s_waitcnt lgkmcnt(0)")
    stamp(E, opt, 1, 8)
    E(f"v_mov_b32_dpp v{Z0+8}, v{Z0+2} row_shr:1 row_mask:0xf bank_mask:0xf")
    E(f"v_cmp_lt_i32 s[{S_MASK}:{S_MASK+1}], s11, v{Z0+2}")
    E(f"v_readlane_b32 s10, v{Z0+2}, s{S_WAVE}")
    E(f"v_add_u32 v{Z0+8}, {1024 - 8}, v{Z0+8}")
    E(f"v_readlane_b32 s{S_LB}, v{Z0+3}, s{S_WAVE}")
    E(f"v_cmp_lt_i32 vcc, v{Z0+3}, v{Z0+8}")
    E(f"v_readfirstlane_b32 s{S_MASK+1}, v{Z0+9}")
    E(f"s_add_u32 s{S_LB}, s{S_LB}, 8")
    E(f"s_or_b32 s11, vcc_lo, s{S_MASK}")
    E(f"s_or_b32 s11, s11, s{S_MASK+1}")
    E(f"s_and_b32 s11, s11, 0xff")
    E("s_cbranch_scc1 M_slowinit")
    E(f"v_add_u32 v{LPX}, s{S_LB}, v{LPX}")
    E(f"v_add3_u32 v{LPE}, v{LPE}, s{S_LB}, 4")
    E(f"s_sub_u32 s{S_NT}, s10, s{S_LB}")
    E(f"v_add_u32 v{Z0+5}, s10, v{Z0+5}")
    E.ds(f"ds_write_b64 v{Z0+5}, {vr(Z0+6,2)}")
    E.ds(f"ds_write_b64 v{Z0+5}, {vr(Z0+6,2)} offset:512")
    E(f"s_add_u32 s10, s{S_LB}, 2")
    E(f"v_add_u32 v{LPZ}, s10, v{LPZ}")
    E(f"v_add3_u32 v{LPS}, v{LPS}, v{Z0+4}, s10")
    E(f"s_add_u32 s{S_NT}, s{S_NT}, 255")
    E(f"s_lshr_b32 s{S_NT}, s{S_NT}, 8")
    lead = opt.get("lead", 1)
    def fill(t):
        rd_list_dma(E, t)
        for gi, g in enumerate(dma_tile(E, t)):
            reg = int(re.search(r"v\[(\d+):", g[2]).group(1))
            E(g[0]); E.need([reg]); E(g[1]); E(g[2])
    if opt.get("leadprio", 3):
        E(f"s_lshr_b32 s10, s{S_WAVE}, 2")
        E(f"s_cmp_eq_u32 s10, {lead}")
        E("s_cbranch_scc0 M_fill0")
        E(f"s_setprio {opt.get('leadprio', 3)}")
        E.label("M_fill0")
    fill(0)
    stamp(E, opt, 1, 2)
    E(f"s_cmp_lg_u32 s{S_INIT}, 0")
    E("s_cbranch_scc1 M_inited")
    E(f"s_mov_b32 s{S_INIT}, 1")
    E("s_waitcnt vmcnt(5)")
    for s_ in range(4): rd_x(E, s_, 1)
    for s_ in range(4):
        for f in range(2):
            E.need(rng(X + 4 * s_, 4))
            E(mfma(zb(f), X + 4 * s_, wb(s_, f), None if s_ == 0 else zb(f)))
            i = s_ * 2 + f
            E.ds(f"ds_read_b128 {vr(WB+4*i,4)}, v{WA} offset:{(8+i)*1024}", rng(WB + 4 * i, 4))
    for s_ in range(4):
        for f in range(2):
            E(mfma(ACC + 16 * f, X + 4 * s_, wv(s_, f), None if s_ == 0 else ACC + 16 * f))
            i = s_ * 2 + f
            if i == 7: E.need(rng(WB, 4))
            E.ds(f"ds_read_b128 {vr(WV+4*i,4)}, v{WA} offset:{(18+i)*1024}", rng(WV + 4 * i, 4))
    E(f"s_mov_b32 s10, {NLOG2E}")
    for f in range(2): E(f"v_mul_f32 v{zb(f)+12}, s10, v{zb(f)+12}")
    for f in range(2):
        E(f"v_mov_b32 v{XA+4*f}, 0")
        E(f"v_cvt_pk_bf16_f32 v{XA+4*f+1}, v{zb(f)+12}, v{zb(f)+12}")
    for f in range(2):
        E(f"v_lshlrev_b32 v{XA+4*f+1}, 16, v{XA+4*f+1}")
        E(f"v_mov_b32 v{XA+4*f+2}, v{XA+4*f+1}")
    E("s_nop 1")
    for f in range(2): E(f"v_permlane32_swap_b32 v{XA+4*f+2}, v{XA+4*f}")
    E("s_nop 1")
    for f in range(2): E(f"v_add_f32 v{XA+4*f+1}, v{XA+4*f}, v{XA+4*f+1}")
    for f in range(2):
        for i in range(16):
            if i & 3: E(f"v_fma_f32 v{zb(f)+i}, v{zb(f)+i}, s10, -v{XA+4*f+(0 if i > 12 else 1)}")
    for f in range(2):
        for s_ in range(2):
            for jj in range(4):
                E(f"v_cvt_pk_bf16_f32 v{xa(s_,f)+jj}, v{zb(f)+8*s_+2*jj}, v{zb(f)+8*s_+2*jj+1}")
    for i in range(4): E(f"v_mov_b32 v{OH+i}, v{CZ}")
    E.drain()
    E.label("M_inited")
    stamp(E, opt, 2, 2)
    E(f"s_cmp_eq_u32 s{S_NT}, 0")
    E(f"s_cbranch_scc1 M_exit")
    rd_dz(E, 0)
    for w in range(4): rd_ds(E, 0, w)
    rd_list_dma(E, 1)
    for i in range(16): E(f"v_mov_b32 v{Z0+i}, 0")
    for i in range(16): E(f"v_mov_b32 v{H+i}, 0")
    for i in range(8): E(f"v_mov_b32 v{S+i}, 0")
    E.need([DZ] + rng(DS, 4))
    sm_idx(E)
    for w in range(4): E(f"v_mad_u32_u24 v{DS+w}, v{DS+w}, s{S_80}, v{CS}")
    E(smf(Z0, 0))
    stamp(E, opt, 3, 2)
    E("s_waitcnt vmcnt(0)")
    stamp(E, opt, 4, 2)
    rd_e(E, 0)
    for s_ in range(4): rd_x(E, s_, 0)
    E.need(rng(EE, 4))
    E(mfma(Z0, EE, wc(0), Z0))
    for s_ in range(4):
        E.need(rng(X + 4 * s_, 4))
        E(mfma(Z0, X + 4 * s_, wb(s_, 0), Z0))
    assert not E.pend
    for g in dma_tile(E, 1):
        for i in g: E(i)
    stamp(E, opt, 5, 2)
    if opt.get("prof"):
        E(f"s_mov_b32 s74, s{S_NT}")
        if opt.get("prof") in (1, 4, 5): E(f"s_mov_b32 s74, s{S_MAX}")
        E("s_memtime s[72:73]")
        E("s_waitcnt lgkmcnt(0)")
    E.label("M_loop")
    tstamp(E, opt)
    tile_body(E, 0, opt)
    E(f"s_sub_u32 s{S_NT}, s{S_NT}, 1")
    E(f"s_cmp_eq_u32 s{S_NT}, 0")
    E("s_cbranch_scc1 M_drain")
    tstamp(E, opt)
    tile_body(E, 1, opt)
    E(f"s_sub_u32 s{S_NT}, s{S_NT}, 1")
    E(f"s_cmp_lg_u32 s{S_NT}, 0")
    E("s_cbranch_scc1 M_loop")
    E.label("M_drain")
    tstamp(E, opt)
    for i in range(8): E(f"v_cvt_pk_bf16_f32 v{MSG+i}, v{H+2*i}, v{H+2*i+1}")
    E("s_nop 1")
    E(mfma(ACC + 16, S, MSG, ACC + 16))
    E(mfma(ACC + 16, S + 4, MSG + 4, ACC + 16))
    E.label("M_exit")
    E(f"s_cmp_eq_u32 s{S_SLOW}, 0")
    E("s_cbranch_scc1 M_epi")
    E("s_waitcnt vmcnt(0) lgkmcnt(0)")
    E(f"s_add_u32 s{S_J}, s{S_J}, 512")
    E(f"s_cmp_ge_u32 s{S_J}, {N_EDGES}")
    E("s_cbranch_scc1 M_epi")
    E.label("M_batch")
    E("s_setprio 0")
    E("s_load_dwordx4 s[44:47], s[0:1], 16")
    E("s_nop 7")
    E("s_nop 7")
    E("s_barrier")
    reset_cnt(0, Z0 + 8)
    E(f"v_add_u32 v{H+1}, s{S_J}, v{TID}")
    E(f"v_lshlrev_b32 v{H+4}, 2, v{H+1}")
    E("s_waitcnt lgkmcnt(0)")
    srd(E, 60, 46, 47, N_EDGES * 4)
    srd(E, 64, 44, 45, N_EDGES * 4)
    E(f"buffer_load_dword v{H+2}, v{H+4}, s[60:63], 0 offen")
    E(f"buffer_load_dword v{H}, v{H+4}, s[64:67], 0 offen")
    E(f"s_mov_b32 s50, {N_EDGES}")
    E(f"v_mov_b32 v{H+6}, 8")
    E(f"v_cmp_gt_u32 s[40:41], s50, v{H+1}")
    E(f"v_and_b32 v{Z0}, 7, v{TID}")
    E(f"v_lshlrev_b32 v{Z0+1}, 5, v{Z0}")
    E(f"v_add_u32 v{Z0+1}, {CNT}, v{Z0+1}")
    E("s_waitcnt vmcnt(0)")
    E(f"v_cmp_eq_u32_sdwa vcc, s2, v{H+2} src0_sel:DWORD src1_sel:BYTE_0")
    E(f"v_bfe_u32 v{H+3}, v{H+2}, 8, 3")
    E(f"v_lshrrev_b32 v{H+2}, 11, v{H+2}")
    E(f"v_lshl_add_u32 v{H+2}, v{H+2}, 1, 14")
    E(f"v_lshl_or_b32 v{H}, v{H+2}, 16, v{H}")
    if not thr: E(f"v_lshl_add_u32 v{H+1}, v{H+3}, 13, v{H+1}")
    E(f"v_lshlrev_b32 v{H+3}, 5, v{H+3}")
    E("s_barrier")
    E("s_and_b64 exec, vcc, s[40:41]")
    E(f"ds_add_rtn_u32 v{Z1}, v{H+3}, v{H+6} offset:{CNT}")
    E("s_waitcnt lgkmcnt(0)")
    E(f"ds_write_b64 v{Z1}, {vr(H,2)}")
    E("s_mov_b64 exec, -1")
    E("s_waitcnt lgkmcnt(0)")
    E("s_barrier")
    E("s_branch M_entry")
    E.label("M_slowinit")
    E(f"s_mov_b32 s{S_SLOW}, 1")
    E(f"s_mov_b32 s{S_J}, 0")
    E(f"v_mov_b32 v{VT}, 1")
    E(f"v_mov_b32 v{Z0}, 0")
    E(f"s_cmp_eq_u32 s{S_WAVE}, 1")
    E("s_cbranch_scc0 M_batch")
    E("s_mov_b64 exec, 1")
    E(f"buffer_atomic_add v{VT}, v{Z0}, s[4:7], 0 offen sc0 sc1")
    E("s_mov_b64 exec, -1")
    E("s_branch M_batch")
    E.label("M_epi")
    stamp(E, opt, 6)
    if opt.get("prof"):
        E("s_memtime s[92:93]")
        E("s_waitcnt lgkmcnt(0)")
        E("s_sub_u32 s92, s92, s72")
        E("s_lshl_b32 s92, s92, 8")
        E("s_or_b32 s74, s74, s92")
    E(f"s_mov_b32 s10, {NLOG2E}")
    E(f"v_and_b32 v{TMP+1}, 31, v{TID}")
    E(f"v_lshlrev_b32 v{TMP+1}, 2, v{TMP+1}")
    E(f"v_and_b32 v{TMP}, 32, v{TID}")
    E(f"v_lshl_add_u32 v{TMP}, v{TMP}, 15, v{TMP+1}")
    E(f"v_readfirstlane_b32 s11, v{VT}")
    E(f"v_mov_b32 v{TMP+2}, 4")
    E(f"v_mov_b32 v{TMP+3}, s{S_T0}")
    E("s_cmp_eq_u32 s11, 255")
    E("s_cbranch_scc0 M_noep")
    E(f"buffer_store_dword v{TMP+3}, v{TMP+2}, s[{S_WS}:{S_WS+3}], 0 offen")
    E.label("M_noep")
    E(f"s_lshl_b32 s11, s{S_NODE}, 7")
    of = opt.get("out_flags", "sc1")
    rl = [1, 2, 3, 5, 6, 7, 9, 10, 11, 13, 14, 15, 12]
    eg = opt.get("eg", (13,))
    p0 = 0
    first = True
    for n_ in eg:
        rs = rl[p0:p0 + n_]; p0 += n_
        regs = [ACC + r for r in rs] + [ACC + 16 + r for r in rs]
        tmp = {a: Z0 + (a - ACC) for a in regs}
        for a in regs:
            if first and a == ACC + 16 + rs[0] and n_ < 8: E("s_nop 7")
            E(f"v_mul_f32 v{tmp[a]}, s10, v{a}")
        first = False
        for a in regs: E(f"v_exp_f32 v{tmp[a]}, v{tmp[a]}")
        for a in regs: E(f"v_add_f32 v{tmp[a]}, 1.0, v{tmp[a]}")
        for a in regs: E(f"v_rcp_f32 v{tmp[a]}, v{tmp[a]}")
        for a in regs: E(f"v_mul_f32 v{a}, v{a}, v{tmp[a]}")
        for r in rs:
            E(f"v_cvt_pk_bf16_f32 v{H+r}, v{ACC+r}, v{ACC+16+r}")
            if r == 12:
                E("s_mov_b32 exec_lo, 0")
                E(f"buffer_store_dword v{H+12}, v{TMP+1}, s[{S_OUT}:{S_OUT+3}], s11 offen {of}")
            else:
                E(f"s_add_u32 s40, s11, {(8*(r&3) + 2*((r>>2)&1) + (r>>3) - 7) << 18}")
                E(f"buffer_store_dword v{H+r}, v{TMP}, s[{S_OUT}:{S_OUT+3}], s40 offen {of}")
    prof_out(E, opt, S_WS, S_WAVE, 0x100000, 8, 74)
    E.label("M_end")
    E("s_endpgm")

def desc(name, vgpr, sgpr=102):
    acc = (vgpr + 3) // 4 * 4
    return [".p2align 6", f".amdhsa_kernel {name}", f"  .amdhsa_next_free_vgpr {vgpr}",
            f"  .amdhsa_next_free_sgpr {sgpr}", f"  .amdhsa_accum_offset {acc}",
            "  .amdhsa_group_segment_fixed_size 0", "  .amdhsa_kernarg_size 80",
            "  .amdhsa_user_sgpr_count 2", "  .amdhsa_user_sgpr_kernarg_segment_ptr 1",
            "  .amdhsa_system_sgpr_workgroup_id_x 1", ".end_amdhsa_kernel"]

def generate(opt):
    global EFLAGS, EMASK, SL_OFF, WS_USE, SM
    SM = opt.get("sm", 1)
    SL_OFF = opt.get("slo", SL_OFF)
    WS_USE = SL_OFF + NLINE * SL_LINE
    EMASK = opt.get("emask", 0x1fffff)
    EFLAGS = opt.get("e_flags", "")
    ref = open(f"cdna_kernels/{NAME}.s.ref").read().split("\n")
    hdr = [l for l in ref if l.startswith(";") and "@launch" not in l and "Override" not in l and "Harness parses" not in l]
    out = hdr[:]
    if opt.get("aslist"):
        out.append(f"; @launch kernel={NAME}_kernel grid=(256,1,1) block=(512,1,1) lds={K2_LDS}")
    else:
        out.append(f"; @launch grid=(256,1,1) block=(512,1,1) lds={K2_LDS}")
    out.append('.amdgcn_target "amdgcn-amd-amdhsa--gfx950"')
    out.append(".text")
    nm = NAME + "_kernel"
    out += [f".globl {nm}", ".p2align 8", f".type {nm},@function"]
    E = Em(); gen_k(E, opt); out += E.L
    out.append('.section .rodata,"a"')
    out += desc(nm, 256 if (opt.get("pf") or opt.get("pf0") or opt.get("prof") == 7 or opt.get("pte") or opt.get("tw2") or opt.get("xm") or opt.get("pfr")) else K2_VGPR)
    return "\n".join(out) + "\n"

if __name__ == "__main__":
    opt = {}
    path = f"cdna_kernels/{NAME}.s"
    for a in sys.argv[1:]:
        k, v = a.split("=", 1)
        if k == "out": path = v
        else:
            try: v = eval(v)
            except Exception: pass
            opt[k] = v
    open(path, "w").write(generate(opt))
    print("wrote", path)
```
